```python
import torch

def _softmax(x, axis=-1):
    return torch.softmax(x, dim=axis)
def _gelu(x):
    return torch.nn.functional.gelu(x, approximate="tanh")
def _silu(x):
    return torch.nn.functional.silu(x)
def _sigmoid(x):
    return torch.sigmoid(x)
def _layernorm(x, axis=-1, eps=1e-5):
    m = x.mean(dim=axis, keepdim=True)
    v = x.var(dim=axis, keepdim=True, unbiased=False)
    return (x - m) / torch.sqrt(v + eps)
def _scatter_add(tgt, idx, src, axis=0):
    return tgt.clone().index_add_(axis, idx, src)
def _segment_sum(src, seg, n):
    out = torch.zeros((n,) + src.shape[1:], dtype=src.dtype)
    return out.index_add_(0, seg, src)
def _pad(x, pw):
    flat = tuple(v for pair in reversed(pw) for v in pair)
    return torch.nn.functional.pad(x, flat)

kernel_name = 'sequential_preLN__sliding_block_cached__swiglu_ffn__decode'

def setup_inputs():

    _w = (lambda a: (lambda t: t.to(torch.bfloat16) if t.is_floating_point() else t)(torch.as_tensor(a)))
    def _A_setup():
        B, Sq, D = 4, 1, 512
        Hq, Hkv, Sk, Dh = 32, 32, 8192, 128
        assert Hq % Hkv == 0, (Hq, Hkv)
        return {
            "x": _w((lambda *s: torch.randn(*s, dtype=torch.bfloat16) * 0.05)(B, Sq, D)),
            "k_cache": _w((lambda *s: torch.randn(*s, dtype=torch.bfloat16) * 3.2)(B, Hkv, Sk, Dh)),
            "v_cache": _w((lambda *s: torch.randn(*s, dtype=torch.bfloat16) * 0.4)(B, Hkv, Sk, Dh)),
            "wq": _w((lambda *s: torch.randn(*s, dtype=torch.bfloat16) * 3.2)(D, Hq * Dh) * (D ** -0.5)),
            "wo": _w((lambda *s: torch.randn(*s, dtype=torch.bfloat16) * 0.4)(Hq * Dh, D) * ((Hq * Dh) ** -0.5)),
        }
    _A_in = _A_setup()

    def _B_setup():
        B, S, D, F = 4, 1, 512, 1376
        return {
            "x": _w((lambda *s: torch.randn(*s, dtype=torch.bfloat16) * 0.05)(B, S, D)),
            "w_gate": _w((lambda *s: torch.randn(*s, dtype=torch.bfloat16) * 0.05)(D, F)),
            "w_up": _w((lambda *s: torch.randn(*s, dtype=torch.bfloat16) * 0.05)(D, F)),
            "w_down": _w((lambda *s: torch.randn(*s, dtype=torch.bfloat16) * 0.05)(F, D)),
        }
    _B_in = _B_setup()

    return {
        "A_x": _A_in["x"],
        "A_k_cache": _A_in["k_cache"],
        "A_v_cache": _A_in["v_cache"],
        "A_wq": _A_in["wq"],
        "A_wo": _A_in["wo"],
        "B_x": _B_in["x"],
        "B_w_gate": _B_in["w_gate"],
        "B_w_up": _B_in["w_up"],
        "B_w_down": _B_in["w_down"],
    }

def reference(A_x, A_k_cache, A_v_cache, A_wq, A_wo, B_x, B_w_gate, B_w_up, B_w_down):
    def _A_ref(x, k_cache, v_cache, wq, wo):
        B, Sq, D = x.shape
        Hq, Dh = 32, 128
        Hkv, Sk = k_cache.shape[1], k_cache.shape[2]
        W = min(4096, max(256, Sk // 4))
        rep = Hq // Hkv
        q = (lambda x, *d: x.permute(*d))((x @ wq).reshape(B, Sq, Hq, Dh), 0, 2, 1, 3)
        k = (lambda x, n, axis: torch.repeat_interleave(x, n, dim=axis))(k_cache[:, :, Sk - W:, :], rep, axis=1)
        v = (lambda x, n, axis: torch.repeat_interleave(x, n, dim=axis))(v_cache[:, :, Sk - W:, :], rep, axis=1)
        scores = torch.einsum("bhqd,bhkd->bhqk", q, k) * (Dh ** -0.5)
        p = _softmax(scores, axis=-1)
        o = torch.einsum("bhqk,bhkd->bhqd", p, v)
        return (lambda x, *d: x.permute(*d))(o, 0, 2, 1, 3).reshape(B, Sq, Hq * Dh) @ wo

    def _B_ref(x, w_gate, w_up, w_down):
        g = _silu(x @ w_gate)
        u = x @ w_up
        return (g * u) @ w_down

    x = A_x
    h = x + _A_ref(_layernorm(x, axis=-1), A_k_cache, A_v_cache, A_wq, A_wo)
    h2 = h + _B_ref(_layernorm(h, axis=-1), B_w_gate, B_w_up, B_w_down)
    return h2
```

```python
import re

TRANS = ("v_exp_f32", "v_log_f32", "v_rcp_f32", "v_rsq_f32", "v_sqrt_f32", "v_sin_f32", "v_cos_f32")


def _regs(tok):
    tok = tok.strip()
    tok = tok.lstrip("-")
    m = re.fullmatch(r"abs\((.*)\)", tok)
    if m:
        tok = m.group(1)
    m = re.fullmatch(r"([vs])(\d+)", tok)
    if m:
        return {(m.group(1), int(m.group(2)))}
    m = re.fullmatch(r"([vs])\[(\d+):(\d+)\]", tok)
    if m:
        return {(m.group(1), i) for i in range(int(m.group(2)), int(m.group(3)) + 1)}
    if tok == "vcc":
        return {("s", 106), ("s", 107)}
    if tok == "exec":
        return {("s", 126), ("s", 127)}
    return set()


class Ins:
    __slots__ = ("text", "op", "kind", "dst", "src", "srcC", "dpp", "states", "ops")


class Emitter:
    def __init__(self):
        self.lines = []
        self.hist = []
        self.nops_inserted = 0

    def raw(self, text):
        self.lines.append(text)

    def comment(self, text):
        self.lines.append("    ; " + text)

    def label(self, name):
        self.lines.append(name + ":")
        self.fence()

    def fence(self, n=0):
        need = 0
        dist = 0
        for h in reversed(self.hist):
            if h.kind == "mfma":
                need = max(need, 8 - dist)
            elif h.kind in ("valu", "trans", "dot", "perm", "rdlane"):
                w = 5 if any(r[0] == "s" for r in h.dst) else 3
                need = max(need, w - dist)
            elif h.kind == "vmem_store_wide":
                need = max(need, 2 - dist)
            dist += h.states
            if dist > 10:
                break
        need = max(need, n)
        if need > 0:
            self._nop(need)
        self.hist = []

    def _nop(self, n):
        while n > 0:
            k = min(n, 16)
            self.lines.append(f"    s_nop {k-1}")
            i = Ins()
            i.text = "s_nop"; i.op = "s_nop"; i.kind = "salu"; i.dst = set(); i.src = set(); i.srcC = set()
            i.dpp = False; i.states = k; i.ops = []
            self.hist.append(i)
            self.nops_inserted += 1
            n -= k

    def parse(self, text):
        t = text.strip()
        parts = t.split(None, 1)
        op = parts[0]
        rest = parts[1] if len(parts) > 1 else ""
        rest_nomod = re.sub(r"quad_perm:\[[^\]]*\]", "quad_perm", rest)
        toks = [x.strip() for x in rest_nomod.split(",")] if rest_nomod else []
        ops = []
        mods = []
        for k, tk in enumerate(toks):
            sp = tk.split()
            if not sp:
                continue
            ops.append(sp[0])
            mods += sp[1:]
        i = Ins()
        i.text = t
        i.op = op
        i.ops = ops
        i.states = 1
        i.dpp = any(m.startswith(("row_", "quad_perm")) for m in mods) or op.endswith("_dpp")
        i.srcC = set()
        R = [_regs(o) for o in ops]
        if op.startswith("v_mfma"):
            i.kind = "mfma"
            i.dst = R[0]
            i.src = R[1] | R[2] | R[3]
            i.srcC = R[3]
        elif op.startswith("v_cmp"):
            i.kind = "valu"
            i.dst = R[0]
            i.src = set().union(*R[1:])
        elif op.startswith(("v_readlane", "v_readfirstlane")):
            i.kind = "rdlane"
            i.dst = R[0]
            i.src = set().union(*R[1:])
        elif op.startswith("v_permlane"):
            i.kind = "perm"
            i.dst = R[0] | R[1]
            i.src = R[0] | R[1]
        elif op.startswith("v_dot2c"):
            i.kind = "dot"
            i.dst = R[0]
            i.src = R[1] | R[2]
            i.srcC = R[0]
        elif op.startswith("v_dot2"):
            i.kind = "dot"
            i.dst = R[0]
            i.src = R[1] | R[2]
            i.srcC = R[3]
        elif op.startswith("v_"):
            i.kind = "trans" if op.replace("_e32", "").replace("_e64", "") in TRANS else "valu"
            i.dst = R[0]
            i.src = set().union(*R[1:]) if len(R) > 1 else set()
            if op.startswith(("v_fmac", "v_mac")):
                i.src |= R[0]
            if op.startswith("v_cndmask") and len(ops) == 3:
                i.src |= _regs("vcc")
            if op.startswith(("v_add_co", "v_sub_co", "v_addc_co", "v_subb_co")):
                i.dst = R[0] | R[1]
                i.src = set().union(*R[2:])
            if i.dpp:
                i.src |= R[0]
        elif op.startswith(("buffer_", "global_")):
            is_store = "store" in op or "atomic" in op
            if is_store:
                i.kind = "vmem_store_wide" if ("x4" in op or "x3" in op) else "vmem"
                i.dst = set()
                i.src = set().union(*R)
            else:
                i.kind = "vmem"
                i.dst = R[0]
                i.src = set().union(*R[1:])
                if "d16" in op:
                    i.src |= R[0]
        elif op.startswith("ds_"):
            i.kind = "ds"
            if "read" in op or "bpermute" in op or "swizzle" in op:
                i.dst = R[0]
                i.src = set().union(*R[1:])
            else:
                i.dst = set()
                i.src = set().union(*R)
        elif op == "s_nop":
            i.kind = "salu"
            i.dst = set(); i.src = set()
            i.states = int(ops[0]) + 1
        else:
            i.kind = "salu"
            i.dst = R[0] if R else set()
            i.src = set().union(*R[1:]) if len(R) > 1 else set()
        return i

    def __call__(self, text):
        for t in text.strip().split("\n"):
            t = t.split(";")[0].strip()
            if t:
                self._one(t)

    def _one(self, text):
        n = self.parse(text)
        need = 0
        dist = 0
        VAL = ("valu", "trans", "dot", "perm", "rdlane")
        is_valu_n = n.kind in VAL or n.kind == "mfma"
        for h in reversed(self.hist):
            req = 0
            hv = {r for r in h.dst if r[0] == "v"}
            hs = {r for r in h.dst if r[0] == "s"}
            if h.kind in VAL:
                if n.dpp and (hv & n.src):
                    req = max(req, 2)
                if n.kind == "rdlane" and (hv & n.src):
                    req = max(req, 1)
                if is_valu_n and (hs & n.src):
                    req = max(req, 2)
                if n.kind in ("vmem", "vmem_store_wide") and (hs & n.src):
                    req = max(req, 5)
                if h.kind == "trans" and n.kind != "trans" and is_valu_n and (hv & n.src):
                    req = max(req, 1)
                if n.kind == "mfma" and (hv & n.src):
                    req = max(req, 2)
                if n.kind == "perm" and (hv & n.src):
                    req = max(req, 2)
                if h.kind == "dot":
                    if n.kind == "dot" and n.op == h.op:
                        if hv & (n.src - n.srcC):
                            req = max(req, 3)
                    else:
                        if (hv & n.src) or (hv & n.srcC) or (hv & n.dst and is_valu_n):
                            req = max(req, 3)
            if h.kind == "mfma":
                if n.kind == "mfma":
                    if hv & (n.src - n.srcC):
                        req = max(req, 8)
                    if (hv & n.srcC) and hv != n.srcC:
                        req = max(req, 6)
                else:
                    if (hv & n.src) or (hv & n.dst):
                        req = max(req, 8)
                if n.kind in VAL and (h.srcC & n.dst):
                    req = max(req, 3)
            if h.kind == "vmem_store_wide" and n.kind in VAL:
                if {r for r in h.src if r[0] == "v"} & n.dst:
                    req = max(req, 2)
            need = max(need, req - dist)
            dist += h.states
            if dist > 12:
                break
        if need > 0:
            self._nop(need)
        self.lines.append("    " + n.text)
        self.hist.append(n)
        if len(self.hist) > 40:
            self.hist = self.hist[-40:]
        if n.op.startswith(("s_cbranch", "s_branch")):
            pass

    def text(self):
        return "\n".join(self.lines) + "\n"


class VmQueue:
    def __init__(self, e):
        self.e = e
        self.n = 0
        self.tags = {}

    def issue(self, tag=None):
        self.n += 1
        if tag is not None:
            self.tags[tag] = self.n

    def wait(self, tag):
        k = self.n - self.tags[tag]
        k = min(k, 63)
        self.e(f"s_waitcnt vmcnt({k})")

    def wait_all(self):
        self.e("s_waitcnt vmcnt(0)")
```

```python
import sys, struct
from emit import Emitter, VmQueue

NAME = "sequential_preLN__sliding_block_cached__swiglu_ffn__decode"
OUT = sys.argv[1] if len(sys.argv) > 1 else f"cdna_kernels/{NAME}.s"

OPT = dict(
    kv_nt=" nt",
    w_nt="",
    f_nt="",
    NB=24,
    sleep=2,
)
for a in sys.argv[2:]:
    k, v = a.split("=")
    OPT[k] = int(v) if v.lstrip("-").isdigit() else ((" " + v) if v else "")


def f32(x):
    return "0x%08x" % struct.unpack("<I", struct.pack("<f", x))[0]


LOG2E = f32(1.4426950408889634)
CSC = f32(128 ** -0.5)
EPS = f32(1e-5)

REC_SZ = 4096
OX_OFF = 2048
ML_OFF = 2304
H_OFF = 0x100000
ACT_OFF = 0x101000
WS_SZ = 0x104000
OOB = 0x7FFF0000

L_XN = 0
L_QP = 2048
L_ST = 4096
L_GS = 4160
L_OP = 4352
L_YP = 8448
L_DP = 16640
LDS_BYTES = 24832

e = Emitter()
lab_id = [0]


def newlab(p):
    lab_id[0] += 1
    return f"L_{p}_{lab_id[0]}"


def allreduce(v, op, t):
    for r in (8, 4, 2, 1):
        e(f"{op} v{v}, v{v}, v{v} row_ror:{r}")
    xrow_reduce(v, op, t)


def xrow_reduce(v, op, t):
    e(f"v_mov_b32 v{t}, v{v}")
    e(f"v_permlane16_swap_b32 v{v}, v{t}")
    e(f"{op} v{v}, v{v}, v{t}")
    e(f"v_mov_b32 v{t}, v{v}")
    e(f"v_permlane32_swap_b32 v{v}, v{t}")
    e(f"{op} v{v}, v{v}, v{t}")


def rnd1(v, t):
    e(f"v_cvt_pk_bf16_f32 v{t}, v{v}, v{v}")
    e(f"v_lshlrev_b32 v{v}, 16, v{t}")


def rnd2(a, b, t):
    e(f"v_cvt_pk_bf16_f32 v{t}, v{a}, v{b}")
    e(f"v_lshlrev_b32 v{a}, 16, v{t}")
    e(f"v_and_b32 v{b}, 0xffff0000, v{t}")


def halving8(a):
    for i in range(4):
        e(f"v_permlane32_swap_b32 v{a+i}, v{a+4+i}")
    for i in range(4):
        e(f"v_add_f32 v{a+i}, v{a+i}, v{a+4+i}")
    e(f"v_permlane16_swap_b32 v{a}, v{a+2}")
    e(f"v_permlane16_swap_b32 v{a+1}, v{a+3}")
    e(f"v_add_f32 v{a}, v{a}, v{a+2}")
    e(f"v_add_f32 v{a+1}, v{a+1}, v{a+3}")


def canon(v, vnan):
    e(f"v_cmp_eq_u32 vcc, -1, v{v}")
    e(f"v_cndmask_b32 v{v}, v{v}, v{vnan}, vcc")


def maxu_tree(regs, t):
    regs = list(regs)
    if len(regs) == 1:
        e(f"v_mov_b32 v{t}, v{regs[0]}")
        return
    if len(regs) == 2:
        e(f"v_max_u32 v{t}, v{regs[0]}, v{regs[1]}")
        return
    e(f"v_max3_u32 v{t}, v{regs[0]}, v{regs[1]}, v{regs[2]}")
    k = 3
    while k < len(regs):
        if k + 1 < len(regs):
            e(f"v_max3_u32 v{t}, v{t}, v{regs[k]}, v{regs[k+1]}")
            k += 2
        else:
            e(f"v_max_u32 v{t}, v{t}, v{regs[k]}")
            k += 1


def poll(load_fn, regs, t, lanes_mask=None):
    lp = newlab("poll")
    dn = newlab("polldone")
    e("s_mov_b32 s14, 0")
    e.label(lp)
    load_fn()
    e("s_waitcnt vmcnt(0)")
    maxu_tree(regs, t)
    e(f"v_cmp_eq_u32 vcc, -1, v{t}")
    if lanes_mask is not None:
        e(f"s_and_b32 vcc_lo, vcc_lo, {lanes_mask[0]}")
        e(f"s_and_b32 vcc_hi, vcc_hi, {lanes_mask[1]}")
    e("s_nop 4")
    e(f"s_cbranch_vccz {dn}")
    e("s_add_u32 s14, s14, 1")
    e("s_cmp_gt_u32 s14, 400000")
    e(f"s_cbranch_scc1 {dn}")
    e(f"s_sleep {OPT['sleep']}")
    e(f"s_branch {lp}")
    e.label(dn)


def layernorm_consts(vmean_in_sum, vvar_sum, vmb, vden, vr, t):
    pass


hdr = open(f"cdna_kernels/{NAME}.s.ref").read().split("\n")
head_lines = []
for ln in hdr:
    if ln.startswith("; @launch"):
        head_lines.append(f"; @launch grid=(256,1,1) block=(768,1,1) lds={LDS_BYTES}")
    elif ln.startswith(";"):
        head_lines.append(ln)
    else:
        break
e.raw("\n".join(head_lines))
e.raw('.amdgcn_target "amdgcn-amd-amdhsa--gfx950"')
e.raw(".text")
e.raw(f".globl {NAME}_kernel")
e.raw(".p2align 8")
e.raw(f".type {NAME}_kernel,@function")
e.raw(f"{NAME}_kernel:")

e("s_cmp_ge_u32 s2, 256")
e("s_cbranch_scc1 L_END")
e("s_load_dwordx16 s[16:31], s[0:1], 0")
e("s_load_dwordx8 s[32:39], s[0:1], 64")
e("v_lshrrev_b32 v4, 6, v0")
e("v_and_b32 v1, 63, v0")
e("v_readfirstlane_b32 s3, v4")
e("v_lshrrev_b32 v2, 4, v1")
e("v_and_b32 v3, 15, v1")
e("s_and_b32 s4, s2, 7")
e("s_lshr_b32 s5, s2, 3")
e("s_and_b32 s6, s5, 3")
e("s_lshl_b32 s6, s6, 3")
e("s_add_u32 s6, s6, s4")
e("s_lshr_b32 s7, s2, 5")
e("s_lshr_b32 s8, s7, 1")
e("s_and_b32 s9, s7, 1")
e(f"s_mov_b32 s96, {LOG2E}")
e(f"s_mov_b32 s97, {CSC}")
e("s_cmp_lt_u32 s3, 4")
e("s_cbranch_scc1 L_SERVICE")

NB = OPT["NB"]
S0 = 16
Q0 = 48
A0 = 52
T0 = 60
SL0 = 68


def slot(n):
    return SL0 + 4 * (n % NB)


vq = VmQueue(e)
e("s_sub_u32 s3, s3, 4")
e("s_lshl_b32 s10, s8, 5")
e("s_add_u32 s10, s10, s6")
e("s_lshl_b32 s10, s10, 21")
e("s_lshl_b32 s11, s9, 18")
e("s_add_u32 s10, s10, s11")
e("s_add_u32 s10, s10, 0x180000")
e("s_lshl_b32 s11, s3, 10")
e("v_lshl_add_u32 v4, v1, 4, s11")
e("s_waitcnt lgkmcnt(0)")
e("s_add_u32 s40, s18, s10")
e("s_addc_u32 s41, s19, 0")
e("s_and_b32 s41, s41, 0xffff")
e("s_mov_b32 s42, 0x40000")
e("s_mov_b32 s43, 0x20000")
e("s_add_u32 s44, s20, s10")
e("s_addc_u32 s45, s21, 0")
e("s_and_b32 s45, s45, 0xffff")
e("s_mov_b32 s46, 0x40000")
e("s_mov_b32 s47, 0x20000")


def stream_load(n):
    srd = "s[40:43]" if n < 32 else "s[44:47]"
    i = n % 32
    e(f"s_mov_b32 s10, {i*8192}")
    s = slot(n)
    e(f"buffer_load_dwordx4 v[{s}:{s+3}], v4, {srd}, s10 offen{OPT['kv_nt']}")
    vq.issue(("L", n))


for n in range(NB):
    stream_load(n)
e(f"v_lshlrev_b32 v5, 5, v3")
e("s_barrier")
for w in range(4):
    e(f"ds_read_b128 v[{T0}:{T0+3}], v5 offset:{L_QP + w*512}")
    e(f"ds_read_b128 v[{T0+4}:{T0+7}], v5 offset:{L_QP + w*512 + 16}")
    e("s_waitcnt lgkmcnt(0)")
    if w == 0:
        for k in range(8):
            e(f"v_mov_b32 v{A0+k}, v{T0+k}")
    else:
        for k in range(8):
            e(f"v_add_f32 v{A0+k}, v{A0+k}, v{T0+k}")
for t in range(4):
    e(f"v_cvt_pk_bf16_f32 v{Q0+t}, v{A0+2*t}, v{A0+2*t+1}")

for n0 in range(0, 32, 4):
    vq.wait(("L", n0 + 3))
    for t in range(4):
        for k in range(4):
            s = slot(n0 + k)
            d = S0 + n0 + k
            if t == 0:
                e(f"v_dot2_f32_bf16 v{d}, v{s}, v{Q0}, 0")
            else:
                e(f"v_dot2c_f32_bf16 v{d}, v{s+t}, v{Q0+t}")
    for k in range(4):
        if n0 + k + NB < 64:
            stream_load(n0 + k + NB)
    for r in (8, 4, 2, 1):
        for k in range(4):
            d = S0 + n0 + k
            e(f"v_add_f32 v{d}, v{d}, v{d} row_ror:{r}")
    for k in (0, 2):
        a, b = S0 + n0 + k, S0 + n0 + k + 1
        rnd2(a, b, T0 + k)
    for k in range(4):
        d = S0 + n0 + k
        e(f"v_mul_f32 v{d}, s97, v{d}")
    for k in (0, 2):
        a, b = S0 + n0 + k, S0 + n0 + k + 1
        rnd2(a, b, T0 + k)

M = T0
L = T0 + 1
e(f"v_max3_f32 v{M}, v{S0}, v{S0+1}, v{S0+2}")
for k in range(3, 31, 2):
    e(f"v_max3_f32 v{M}, v{M}, v{S0+k}, v{S0+k+1}")
e(f"v_max_f32 v{M}, v{M}, v{S0+31}")
xrow_reduce(M, "v_max_f32", T0 + 2)
e(f"v_mov_b32 v{L}, 0")
for k in range(0, 32, 4):
    for j in range(4):
        e(f"v_sub_f32 v{T0+4+j}, v{S0+k+j}, v{M}")
    for j in range(4):
        e(f"v_mul_f32 v{T0+4+j}, s96, v{T0+4+j}")
    for j in range(4):
        e(f"v_exp_f32 v{T0+4+j}, v{T0+4+j}")
    for j in range(4):
        e(f"v_add_f32 v{L}, v{L}, v{T0+4+j}")
xrow_reduce(L, "v_add_f32", T0 + 2)
e("s_lshl_b32 s11, s3, 3")
e("v_mov_b32 v6, s11")
e(f"ds_write_b64 v6, v[{M}:{L}] offset:{L_ST}")
e("s_waitcnt lgkmcnt(0)")
e("s_barrier")
e("s_barrier")
e("v_mov_b32 v6, 0")
e(f"ds_read_b64 v[{M}:{L}], v6 offset:{L_GS}")
e("s_waitcnt lgkmcnt(0)")
for k in range(0, 32, 4):
    for j in range(4):
        e(f"v_sub_f32 v{S0+k+j}, v{S0+k+j}, v{M}")
    for j in range(4):
        e(f"v_mul_f32 v{S0+k+j}, s96, v{S0+k+j}")
    for j in range(4):
        e(f"v_exp_f32 v{S0+k+j}, v{S0+k+j}")
    for j in range(4):
        e(f"v_mul_f32 v{S0+k+j}, v{S0+k+j}, v{L}")
    for j in range(4):
        e(f"v_cvt_pk_bf16_f32 v{S0+k+j}, v{S0+k+j}, 0")
for k in range(8):
    e(f"v_mov_b32 v{A0+k}, 0")
for n in range(32, 64):
    i = n - 32
    if i % 2 == 0:
        vq.wait(("L", n + 1))
    s = slot(n)
    ph = T0 + 4 + (i % 4)
    e(f"v_lshlrev_b32 v{ph}, 16, v{S0+i}")
    for t in range(4):
        e(f"v_dot2c_f32_bf16 v{A0+2*t}, v{s+t}, v{S0+i}")
        e(f"v_dot2c_f32_bf16 v{A0+2*t+1}, v{s+t}, v{ph}")
    if n + NB < 64:
        stream_load(n + NB)
halving8(A0)
e("s_lshl_b32 s11, s3, 9")
e("v_lshl_add_u32 v6, v2, 3, v5")
e("v_add_u32 v6, s11, v6")
e(f"ds_write_b64 v6, v[{A0}:{A0+1}] offset:{L_OP}")
e("s_waitcnt lgkmcnt(0)")
e("s_barrier")
e("s_endpgm")

e.fence()
e.raw("L_SERVICE:")
vq = VmQueue(e)
W0 = 32
F0 = 96
e("s_lshl_b32 s92, s8, 6")
e("s_lshl_b32 s10, s6, 1")
e("s_add_u32 s92, s92, s10")
e("s_add_u32 s93, s92, s9")
e("s_xor_b32 s10, s9, 1")
e("s_add_u32 s92, s92, s10")
e("s_lshl_b32 s93, s93, 12")
e("s_lshl_b32 s92, s92, 12")
e("s_mov_b32 s94, 0")
e("s_mul_i32 s95, s4, 11")
e("s_add_u32 s95, s95, s5")
e("s_cmp_lt_u32 s5, 11")
e("s_cselect_b32 s10, 1, 0")
e("s_cmp_lt_u32 s95, 86")
e("s_cselect_b32 s11, 1, 0")
e("s_and_b32 s94, s10, s11")
e("s_sub_u32 s10, s5, 11")
e("s_cmp_lt_u32 s10, 4")
lr = newlab("role")
e(f"s_cbranch_scc0 {lr}")
e("s_mov_b32 s94, 2")
e("s_lshl_b32 s95, s4, 2")
e("s_add_u32 s95, s95, s10")
e.label(lr)
e("v_lshlrev_b32 v4, 4, v0")
e("v_add_u32 v4, s93, v4")
e(f"v_mov_b32 v5, {OOB}")
e("v_cmp_gt_u32 vcc, 160, v0")
e("v_cndmask_b32 v6, v5, v4, vcc")
e("s_lshr_b32 s10, s2, 6")
e("s_lshl_b32 s10, s10, 10")
e("s_and_b32 s11, s2, 63")
e("s_lshl_b32 s11, s11, 4")
e("s_add_u32 s12, s10, s11")
e(f"s_add_u32 s13, s12, {H_OFF}")
e("v_mov_b32 v4, s13")
e("v_cmp_eq_u32 vcc, 0xa0, v0")
e("v_cndmask_b32 v6, v6, v4, vcc")
e("s_lshl_b32 s10, s95, 5")
e(f"s_add_u32 s10, s10, {ACT_OFF}")
e("s_cmp_eq_u32 s94, 1")
e(f"s_cselect_b32 s10, s10, {OOB}")
e("v_subrev_u32 v7, 0xc0, v0")
e("v_lshrrev_b32 v4, 1, v7")
e("v_mul_u32_u24 v4, 2752, v4")
e("v_and_b32 v8, 1, v7")
e("v_lshl_add_u32 v4, v8, 4, v4")
e("v_add_u32 v4, s10, v4")
e("v_cmp_gt_u32 vcc, 8, v7")
e("v_cndmask_b32 v6, v6, v4, vcc")
for k in range(8, 12):
    e(f"v_mov_b32 v{k}, -1")
e("s_lshl_b32 s10, s8, 10")
e("v_lshl_add_u32 v5, v1, 4, s10")
e("s_waitcnt lgkmcnt(0)")
e("s_mov_b32 s48, s38")
e("s_and_b32 s49, s39, 0xffff")
e(f"s_mov_b32 s50, {WS_SZ}")
e("s_mov_b32 s51, 0x20000")
e("s_mov_b32 s40, s22")
e("s_and_b32 s41, s23, 0xffff")
e("s_mov_b32 s42, 0x400000")
e("s_mov_b32 s43, 0x20000")
e("s_mov_b32 s44, s24")
e("s_and_b32 s45, s25, 0xffff")
e("s_mov_b32 s46, 0x400000")
e("s_mov_b32 s47, 0x20000")
e("buffer_store_dwordx4 v[8:11], v6, s[48:51], 0 offen sc1")
vq.issue("clr")
e("global_load_dwordx4 v[12:15], v5, s[16:17]")
vq.issue("x")
e("s_lshl_b32 s10, s3, 20")
e("s_lshl_b32 s11, s6, 8")
e("s_add_u32 s10, s10, s11")
e("v_lshlrev_b32 v4, 18, v2")
e("v_lshl_add_u32 v4, v3, 4, v4")
e("v_add_u32 v4, s10, v4")
for i in range(32):
    e(f"s_mov_b32 s10, {i*8192}")
    e(f"buffer_load_dwordx4 v[{W0+4*i}:{W0+4*i+3}], v4, s[40:43], s10 offen{OPT['w_nt']}")
    vq.issue(("wq", i))
e("v_lshl_add_u32 v5, v2, 2, s12")
e("global_load_dword v31, v5, s[16:17]")
vq.issue("xr")
vq.wait("x")
X = 16
for t in range(4):
    e(f"v_lshlrev_b32 v{X+2*t}, 16, v{12+t}")
    e(f"v_and_b32 v{X+2*t+1}, 0xffff0000, v{12+t}")


def ln_core(X, n, red, inv_n, vs, vt, vmb, vden, vr):
    e(f"v_add_f32 v{vs}, v{X}, v{X+1}")
    for k in range(2, n):
        e(f"v_add_f32 v{vs}, v{vs}, v{X+k}")
    red(vs)
    e(f"v_mul_f32 v{vs}, {inv_n}, v{vs}")
    e(f"v_mov_b32 v{vmb}, v{vs}")
    rnd1(vmb, vt)
    e(f"v_sub_f32 v{vt}, v{X}, v{vs}")
    e(f"v_mul_f32 v{vden}, v{vt}, v{vt}")
    for k in range(1, n):
        e(f"v_sub_f32 v{vt}, v{X+k}, v{vs}")
        e(f"v_fmac_f32 v{vden}, v{vt}, v{vt}")
    red(vden)
    e(f"v_mul_f32 v{vden}, {inv_n}, v{vden}")
    rnd1(vden, vt)
    e(f"v_add_f32 v{vden}, {EPS}, v{vden}")
    rnd1(vden, vt)
    e(f"v_sqrt_f32 v{vden}, v{vden}")
    rnd1(vden, vt)
    e(f"v_rcp_f32 v{vr}, v{vden}")


def ln_apply(v, vmb, vden, vr, t1, t2):
    e(f"v_sub_f32 v{v}, v{v}, v{vmb}")
    rnd1(v, t1)
    e(f"v_mul_f32 v{t1}, v{v}, v{vr}")
    e(f"v_fma_f32 v{t2}, -v{t1}, v{vden}, v{v}")
    e(f"v_fma_f32 v{v}, v{t2}, v{vr}, v{t1}")


INV512 = f32(1.0 / 512)
ln_core(X, 8, lambda v: allreduce(v, "v_add_f32", 7), INV512, 24, 25, 26, 27, 28)
for k in range(8):
    ln_apply(X + k, 26, 27, 28, 24, 25)
for k in range(0, 8, 2):
    rnd2(X + k, X + k + 1, 24)
e("v_lshlrev_b32 v5, 5, v1")
e(f"ds_write_b128 v5, v[{X}:{X+3}] offset:{L_XN}")
e(f"ds_write_b128 v5, v[{X+4}:{X+7}] offset:{L_XN+16}")
e("s_lshl_b32 s10, s3, 9")
e("v_lshl_add_u32 v5, v2, 7, s10")
e("s_waitcnt lgkmcnt(0)")
QA = 8
for k in range(8):
    e(f"v_mov_b32 v{QA+k}, 0")
for i in range(32):
    if i % 4 == 0:
        e(f"ds_read_b128 v[{X}:{X+3}], v5 offset:{L_XN + i*4}")
        vq.wait(("wq", i + 3))
        e("s_waitcnt lgkmcnt(0)")
        for k in range(4):
            e(f"v_lshrrev_b32 v{X+4+k}, 16, v{X+k}")
    s = W0 + 4 * i
    for t in range(4):
        e(f"v_dot2c_f32_bf16 v{QA+2*t}, v{s+t}, v{X+4+(i%4)}")
        e(f"v_dot2c_f32_bf16 v{QA+2*t+1}, v{s+t}, v{X+(i%4)}")
halving8(QA)
e("v_lshlrev_b32 v5, 5, v3")
e("v_lshl_add_u32 v5, v2, 3, v5")
e("s_lshl_b32 s10, s3, 9")
e("v_add_u32 v6, s10, v5")
e(f"ds_write_b64 v6, v[{QA}:{QA+1}] offset:{L_QP}")
e("s_waitcnt lgkmcnt(0)")
e("s_barrier")
l1 = newlab("noadd")
e("s_cmp_eq_u32 s3, 0")
e(f"s_cbranch_scc0 {l1}")
e("v_mov_b32 v6, 0")
e("v_mov_b32 v7, 1")
e("s_mov_b64 exec, 1")
e("global_atomic_add v6, v7, s[36:37]")
e("s_mov_b64 exec, -1")
e.label(l1)
e("s_lshl_b32 s10, s6, 7")
e("s_lshl_b32 s11, s9, 6")
e("s_add_u32 s10, s10, s11")
e("s_lshl_b32 s11, s3, 4")
e("s_add_u32 s10, s10, s11")
e("s_lshl_b32 s10, s10, 10")
e("v_lshl_add_u32 v4, v1, 4, s10")
for r in range(16):
    if r % 4 == 0:
        e(f"s_mov_b32 s10, {(r//4)*4096}")
    e(f"buffer_load_dwordx4 v[{W0+4*r}:{W0+4*r+3}], v4, s[44:47], s10 offen offset:{(r%4)*1024}{OPT['w_nt']}")
lgu = newlab("ldgu")
ldn = newlab("lddn")
lfe = newlab("ldend")
e("s_cmp_eq_u32 s94, 1")
e(f"s_cbranch_scc1 {lgu}")
e("s_cmp_eq_u32 s94, 2")
e(f"s_cbranch_scc1 {ldn}")
e(f"s_branch {lfe}")
e.label(lgu)
e("s_mov_b32 s52, s28")
e("s_and_b32 s53, s29, 0xffff")
e(f"s_mov_b32 s54, {512*2752}")
e("s_mov_b32 s55, 0x20000")
e("s_mov_b32 s56, s30")
e("s_and_b32 s57, s31, 0xffff")
e(f"s_mov_b32 s58, {512*2752}")
e("s_mov_b32 s59, 0x20000")
e("s_lshl_b32 s10, s3, 7")
e("v_lshl_add_u32 v4, v2, 3, s10")
e("v_mul_u32_u24 v4, 2752, v4")
e("s_lshl_b32 s10, s95, 4")
e("v_add_u32 v5, s10, v3")
e("v_lshl_add_u32 v4, v5, 1, v4")
for kk in range(4):
    for t in range(4):
        for hi in range(2):
            e(f"s_mov_b32 s10, {(kk*32+2*t+hi)*2752}")
            e(f"buffer_load_ushort v{F0+32*hi+kk*4+t}, v4, s[52:55], s10 offen{OPT['f_nt']}")
            e(f"buffer_load_ushort v{F0+32*hi+16+kk*4+t}, v4, s[56:59], s10 offen{OPT['f_nt']}")
e("s_waitcnt vmcnt(0)")
for k in range(32):
    e(f"v_lshl_or_b32 v{F0+k}, v{F0+32+k}, 16, v{F0+k}")
e(f"s_branch {lfe}")
e.label(ldn)
e("s_mov_b32 s52, s32")
e("s_and_b32 s53, s33, 0xffff")
e(f"s_mov_b32 s54, {1376*1024}")
e("s_mov_b32 s55, 0x20000")
e("s_mul_i32 s10, s3, 352")
e("v_lshl_add_u32 v4, v2, 3, s10")
e("v_lshlrev_b32 v4, 10, v4")
e("s_lshl_b32 s10, s95, 4")
e("v_add_u32 v5, s10, v3")
e("v_lshl_add_u32 v4, v5, 1, v4")
for kk0, kk1 in ((0, 5), (5, 10), (10, 11)):
    TB = F0 + 44
    for kk in range(kk0, kk1):
        for t in range(4):
            for hi in range(2):
                e(f"s_mov_b32 s10, {(kk*32+2*t+hi)*1024}")
                dst = (TB + (kk-kk0)*4 + t) if hi else (F0 + kk*4 + t)
                e(f"buffer_load_ushort v{dst}, v4, s[52:55], s10 offen{OPT['f_nt']}")
    e("s_waitcnt vmcnt(0)")
    for kk in range(kk0, kk1):
        for t in range(4):
            e(f"v_lshl_or_b32 v{F0+kk*4+t}, v{TB+(kk-kk0)*4+t}, 16, v{F0+kk*4+t}")
e.label(lfe)
e("v_mov_b32 v30, 0x7fc00000")
e("v_mov_b32 v29, 0x7fc07fc0")
e("s_barrier")
lB = newlab("skipml")
e("s_cmp_eq_u32 s3, 0")
e(f"s_cbranch_scc0 {lB}")
e("v_mov_b32 v6, 0")
for k in range(4):
    e(f"ds_read_b128 v[{8+4*k}:{11+4*k}], v6 offset:{L_ST+16*k}")
lp = newlab("cnt")
dn = newlab("cntdone")
e("s_mov_b32 s14, 0")
e.label(lp)
e("global_load_dword v7, v6, s[36:37] sc1")
e("s_waitcnt vmcnt(0)")
e("v_readfirstlane_b32 s10, v7")
e("s_nop 3")
e("s_cmp_ge_u32 s10, 256")
e(f"s_cbranch_scc1 {dn}")
e("s_add_u32 s14, s14, 1")
e("s_cmp_gt_u32 s14, 400000")
e(f"s_cbranch_scc1 {dn}")
e(f"s_sleep {OPT['sleep']}")
e(f"s_branch {lp}")
e.label(dn)
e("s_waitcnt lgkmcnt(0)")
e("v_max3_f32 v24, v8, v10, v12")
e("v_max3_f32 v24, v24, v14, v16")
e("v_max3_f32 v24, v24, v18, v20")
e("v_max_f32 v24, v24, v22")
e("v_mov_b32 v25, 0")
for k in range(8):
    e(f"v_sub_f32 v26, v{8+2*k}, v24")
    e("v_mul_f32 v26, s96, v26")
    e("v_exp_f32 v26, v26")
    e(f"v_fmac_f32 v25, v26, v{9+2*k}")
canon(24, 30)
canon(25, 30)
e(f"s_add_u32 s10, s93, {ML_OFF}")
e("v_mov_b32 v6, s10")
e("s_mov_b64 exec, 1")
e("buffer_store_dwordx2 v[24:25], v6, s[48:51], 0 offen sc1")
e("s_mov_b64 exec, -1")
e(f"s_add_u32 s10, s92, {ML_OFF}")
e("v_mov_b32 v6, s10")
poll(lambda: e("buffer_load_dwordx2 v[26:27], v6, s[48:51], 0 offen sc1"), [26, 27], 7)
e("v_max_f32 v8, v24, v26")
e("v_sub_f32 v9, v24, v8")
e("v_sub_f32 v10, v26, v8")
e("v_mul_f32 v9, s96, v9")
e("v_mul_f32 v10, s96, v10")
e("v_exp_f32 v9, v9")
e("v_exp_f32 v10, v10")
e("v_mul_f32 v9, v9, v25")
e("v_mul_f32 v10, v10, v27")
e("v_add_f32 v10, v9, v10")
e("v_rcp_f32 v9, v10")
e("v_fma_f32 v11, -v10, v9, 1.0")
e("v_fma_f32 v9, v11, v9, v9")
e("v_mov_b32 v6, 0")
e(f"ds_write_b64 v6, v[8:9] offset:{L_GS}")
e("s_waitcnt lgkmcnt(0)")
e.label(lB)
e("s_barrier")
e("v_and_b32 v4, 31, v1")
e("v_cmp_gt_u32 vcc, 16, v4")
e("s_lshl_b32 s10, s9, 6")
e("s_xor_b32 s11, s10, 64")
e("v_mov_b32 v5, s10")
e("v_mov_b32 v6, s11")
e("v_cndmask_b32 v5, v6, v5, vcc")
e("s_lshl_b32 s10, s3, 4")
e("v_add3_u32 v5, v5, s10, v3")
e("v_lshlrev_b32 v5, 2, v5")
e("s_lshl_b32 s10, s3, 6")
e(f"s_add_u32 s11, s10, {OX_OFF}")
e("s_add_u32 s10, s11, s93")
e("v_lshl_add_u32 v6, v3, 2, s10")
e("s_add_u32 s10, s11, s92")
e("v_lshl_add_u32 v7, v3, 2, s10")
e("s_barrier")
for w in range(8):
    e(f"ds_read_b32 v{8+w}, v5 offset:{L_OP + w*512}")
e("s_waitcnt lgkmcnt(0)")
e("v_add_f32 v8, v8, v9")
e("v_add_f32 v10, v10, v11")
e("v_add_f32 v12, v12, v13")
e("v_add_f32 v14, v14, v15")
e("v_add_f32 v8, v8, v10")
e("v_add_f32 v12, v12, v14")
e("v_add_f32 v8, v8, v12")
e("v_mov_b32 v9, v8")
canon(9, 30)
e("s_mov_b32 exec_lo, 0xffff0000")
e("s_mov_b32 exec_hi, 0")
e("buffer_store_dword v9, v6, s[48:51], 0 offen sc1")
e("s_mov_b64 exec, -1")
poll(lambda: e("buffer_load_dword v10, v7, s[48:51], 0 offen sc1"), [10], 11)
e("v_add_f32 v8, v8, v10")
e("v_cvt_pk_bf16_f32 v8, v8, 0")
for r in range(16):
    e(f"v_readlane_b32 s{60+r}, v8, {r}")
for r in range(16):
    e(f"s_lshl_b32 s{76+r}, s{60+r}, 16")
YA = 8
for k in range(8):
    e(f"v_mov_b32 v{YA+k}, 0")
for r in range(16):
    s = W0 + 4 * r
    for t in range(4):
        e(f"v_dot2c_f32_bf16 v{YA+2*t}, s{60+r}, v{s+t}")
        e(f"v_dot2c_f32_bf16 v{YA+2*t+1}, s{76+r}, v{s+t}")
e("s_lshl_b32 s10, s3, 11")
e("v_lshl_add_u32 v5, v1, 5, s10")
e(f"ds_write_b128 v5, v[{YA}:{YA+3}] offset:{L_YP}")
e(f"ds_write_b128 v5, v[{YA+4}:{YA+7}] offset:{L_YP+16}")
e("s_waitcnt lgkmcnt(0)")
e("s_barrier")
lred = newlab("red")
lrole = newlab("role2")
e("s_cmp_eq_u32 s3, 0")
e(f"s_cbranch_scc1 {lred}")
e("s_cmp_lt_u32 s3, 2")
e(f"s_cbranch_scc1 {lrole}")
e("s_sub_u32 s10, s3, 2")
e("s_lshl_b32 s10, s10, 10")
e("v_lshl_add_u32 v5, v1, 4, s10")
for w in range(4):
    e(f"ds_read_b128 v[{8+4*w}:{11+4*w}], v5 offset:{L_YP + w*2048}")
e("s_waitcnt lgkmcnt(0)")
for k in range(4):
    e(f"v_add_f32 v{8+k}, v{8+k}, v{12+k}")
    e(f"v_add_f32 v{16+k}, v{16+k}, v{20+k}")
for k in range(4):
    e(f"v_add_f32 v{8+k}, v{8+k}, v{16+k}")
for k in range(4):
    canon(8 + k, 30)
e("v_add_u32 v5, s93, v5")
e("buffer_store_dwordx4 v[8:11], v5, s[48:51], 0 offen sc1")
e(f"s_branch {lrole}")
e.label(lred)
e("s_lshr_b32 s10, s2, 6")
e("s_lshl_b32 s10, s10, 18")
e("s_and_b32 s11, s2, 63")
e("s_lshl_b32 s11, s11, 5")
e("s_add_u32 s10, s10, s11")
e("v_lshl_add_u32 v5, v1, 12, s10")


def red_loads():
    e("buffer_load_dwordx4 v[8:11], v5, s[48:51], 0 offen sc1")
    e("buffer_load_dwordx4 v[12:15], v5, s[48:51], 0 offen offset:16 sc1")


poll(red_loads, range(8, 16), 16)
halving8(8)
for r in (8, 4, 2, 1):
    e(f"v_add_f32 v8, v8, v8 row_ror:{r}")
    e(f"v_add_f32 v9, v9, v9 row_ror:{r}")
rnd2(8, 9, 16)
e("v_lshlrev_b32 v10, 16, v31")
e("v_and_b32 v11, 0xffff0000, v31")
e("v_add_f32 v8, v8, v10")
e("v_add_f32 v9, v9, v11")
e("v_cvt_pk_bf16_f32 v8, v8, v9")
canon(8, 29)
e("v_lshl_add_u32 v5, v2, 2, s13")
e("s_mov_b32 exec_lo, 0x00010001")
e("s_mov_b32 exec_hi, 0x00010001")
e("buffer_store_dword v8, v5, s[48:51], 0 offen sc1")
e("s_mov_b64 exec, -1")
e.label(lrole)
lgu2 = newlab("gu")
ldn2 = newlab("dn")
e("s_cmp_eq_u32 s94, 1")
e(f"s_cbranch_scc1 {lgu2}")
e("s_cmp_eq_u32 s94, 2")
e(f"s_cbranch_scc1 {ldn2}")
e("s_endpgm")

e.label(lgu2)
HS = 32
HF = 48
HX = 64
e("v_and_b32 v4, 3, v1")
e("v_lshrrev_b32 v5, 2, v1")
e("v_lshlrev_b32 v4, 10, v4")
e("v_lshl_add_u32 v5, v5, 6, v4")
e(f"v_add_u32 v5, {H_OFF}, v5")
e("s_lshl_b32 s10, s3, 8")
e(f"s_add_u32 s10, s10, {H_OFF}")
e("v_lshl_add_u32 v6, v2, 4, v4")
e("v_add_u32 v6, s10, v6")


def h_loads():
    for k in range(4):
        e(f"buffer_load_dwordx4 v[{HS+4*k}:{HS+4*k+3}], v5, s[48:51], 0 offen offset:{16*k} sc1")
    for k in range(4):
        e(f"buffer_load_dwordx4 v[{HF+4*k}:{HF+4*k+3}], v6, s[48:51], 0 offen offset:{64*k} sc1")


poll(h_loads, range(HS, HS + 32), 7)
for k in range(16):
    e(f"v_lshlrev_b32 v{HX+2*k}, 16, v{HS+k}")
    e(f"v_and_b32 v{HX+2*k+1}, 0xffff0000, v{HS+k}")


def red_b4(v):
    e(f"v_add_f32 v{v}, v{v}, v{v} row_ror:8")
    e(f"v_add_f32 v{v}, v{v}, v{v} row_ror:4")
    xrow_reduce(v, "v_add_f32", 7)


ln_core(HX, 32, red_b4, INV512, 24, 25, 26, 27, 28)
for k in range(16):
    e(f"v_lshlrev_b32 v{HX+2*k}, 16, v{HF+k}")
    e(f"v_and_b32 v{HX+2*k+1}, 0xffff0000, v{HF+k}")
for k in range(32):
    ln_apply(HX + k, 26, 27, 28, 24, 25)
for k in range(16):
    e(f"v_cvt_pk_bf16_f32 v{HF+k}, v{HX+2*k}, v{HX+2*k+1}")
for kk in range(4):
    c = "0" if kk == 0 else "v[8:11]"
    e(f"v_mfma_f32_16x16x32_bf16 v[8:11], v[{HF+4*kk}:{HF+4*kk+3}], v[{F0+4*kk}:{F0+4*kk+3}], {c}")
for kk in range(4):
    c = "0" if kk == 0 else "v[12:15]"
    e(f"v_mfma_f32_16x16x32_bf16 v[12:15], v[{HF+4*kk}:{HF+4*kk+3}], v[{F0+16+4*kk}:{F0+16+4*kk+3}], {c}")
e("s_lshl_b32 s10, s3, 11")
e("v_lshl_add_u32 v5, v1, 4, s10")
e(f"ds_write_b128 v5, v[8:11] offset:{L_DP}")
e(f"ds_write_b128 v5, v[12:15] offset:{L_DP+1024}")
e("s_waitcnt lgkmcnt(0)")
e("s_barrier")
lend = newlab("guend")
e("s_cmp_eq_u32 s3, 0")
e(f"s_cbranch_scc0 {lend}")
e("v_and_b32 v4, 7, v1")
e("v_bfe_u32 v5, v1, 3, 2")
e("v_lshlrev_b32 v6, 5, v4")
e("v_lshl_add_u32 v6, v5, 2, v6")
for w in range(4):
    o = (L_DP + w * 2048) // 4
    e(f"v_add_u32 v7, {L_DP + w*2048}, v6")
    e(f"ds_read2_b32 v[{8+2*w}:{9+2*w}], v7 offset0:0 offset1:4")
    e(f"v_add_u32 v7, {L_DP + w*2048 + 1024}, v6")
    e(f"ds_read2_b32 v[{16+2*w}:{17+2*w}], v7 offset0:0 offset1:4")
e("s_waitcnt lgkmcnt(0)")
for base in (8, 16):
    for k in range(2):
        e(f"v_add_f32 v{base+k}, v{base+k}, v{base+2+k}")
        e(f"v_add_f32 v{base+4+k}, v{base+4+k}, v{base+6+k}")
    for k in range(2):
        e(f"v_add_f32 v{base+k}, v{base+k}, v{base+4+k}")
rnd2(8, 9, 24)
rnd2(16, 17, 24)
for k in range(2):
    e(f"v_mul_f32 v{10+k}, s96, v{8+k}")
    e(f"v_sub_f32 v{10+k}, 0, v{10+k}")
    e(f"v_exp_f32 v{10+k}, v{10+k}")
    e(f"v_add_f32 v{10+k}, 1.0, v{10+k}")
    e(f"v_rcp_f32 v{12+k}, v{10+k}")
    e(f"v_mul_f32 v{14+k}, v{8+k}, v{12+k}")
    e(f"v_fma_f32 v{18+k}, -v{14+k}, v{10+k}, v{8+k}")
    e(f"v_fma_f32 v{18+k}, v{18+k}, v{12+k}, v{14+k}")
    e(f"v_cmp_class_f32 vcc, v{18+k}, 3")
    e(f"v_cndmask_b32 v{8+k}, v{18+k}, v{14+k}, vcc")
rnd2(8, 9, 24)
e("v_mul_f32 v8, v8, v16")
e("v_mul_f32 v9, v9, v17")
e("v_cvt_pk_bf16_f32 v8, v8, v9")
canon(8, 29)
e("v_mul_u32_u24 v5, 2752, v5")
e("v_lshl_add_u32 v5, v4, 2, v5")
e("s_lshl_b32 s10, s95, 5")
e(f"s_add_u32 s10, s10, {ACT_OFF}")
e("v_add_u32 v5, s10, v5")
e("s_mov_b32 exec_hi, 0")
e("buffer_store_dword v8, v5, s[48:51], 0 offen sc1")
e("s_mov_b64 exec, -1")
e.label(lend)
e("s_endpgm")

e.label(ldn2)
AF = 32
e("v_and_b32 v4, 3, v1")
e("v_mul_u32_u24 v4, 2752, v4")
e("v_lshl_add_u32 v4, v2, 4, v4")
e("s_mul_i32 s10, s3, 704")
e(f"s_add_u32 s10, s10, {ACT_OFF}")
e("v_add_u32 v5, s10, v4")
e("v_and_b32 v4, 7, v1")
e("v_bfe_u32 v6, v1, 3, 2")
e("v_lshlrev_b32 v7, 10, v6")
e("v_lshl_add_u32 v7, v4, 2, v7")
e("s_lshl_b32 s10, s95, 5")
e("v_add_u32 v7, s10, v7")
e(f"v_add_u32 v16, {H_OFF}, v7")
lw3 = newlab("w3")
lj = newlab("dj")
e("s_cmp_eq_u32 s3, 3")
e(f"s_cbranch_scc1 {lw3}")


def act_loads(n):
    def f():
        for k in range(n):
            e(f"buffer_load_dwordx4 v[{AF+4*k}:{AF+4*k+3}], v5, s[48:51], 0 offen offset:{64*k} sc1")
        e(f"buffer_load_dword v17, v16, s[48:51], 0 offen sc1")
    return f


poll(act_loads(11), list(range(AF, AF + 44)) + [17], 18)
e(f"v_mfma_f32_16x16x32_bf16 v[8:11], v[{AF+40}:{AF+43}], v[{F0+40}:{F0+43}], 0")
e(f"s_branch {lj}")
e.label(lw3)
poll(act_loads(10), list(range(AF, AF + 40)) + [17], 18)
for k in range(4):
    e(f"v_mov_b32 v{8+k}, 0")
e.label(lj)
for kk in range(10):
    e(f"v_mfma_f32_16x16x32_bf16 v[8:11], v[{AF+4*kk}:{AF+4*kk+3}], v[{F0+4*kk}:{F0+4*kk+3}], v[8:11]")
e("s_lshl_b32 s10, s3, 10")
e("v_lshl_add_u32 v5, v1, 4, s10")
e(f"ds_write_b128 v5, v[8:11] offset:{L_DP}")
e("s_waitcnt lgkmcnt(0)")
e("s_barrier")
lend = newlab("dnend")
e("s_cmp_eq_u32 s3, 0")
e(f"s_cbranch_scc0 {lend}")
e("v_lshlrev_b32 v5, 5, v4")
e("v_lshl_add_u32 v5, v6, 2, v5")
for w in range(4):
    e(f"v_add_u32 v19, {L_DP + w*1024}, v5")
    e(f"ds_read2_b32 v[{8+2*w}:{9+2*w}], v19 offset0:0 offset1:4")
e("s_waitcnt lgkmcnt(0)")
for k in range(2):
    e(f"v_add_f32 v{8+k}, v{8+k}, v{10+k}")
    e(f"v_add_f32 v{12+k}, v{12+k}, v{14+k}")
for k in range(2):
    e(f"v_add_f32 v{8+k}, v{8+k}, v{12+k}")
rnd2(8, 9, 24)
e("v_lshlrev_b32 v10, 16, v17")
e("v_and_b32 v11, 0xffff0000, v17")
e("v_add_f32 v8, v8, v10")
e("v_add_f32 v9, v9, v11")
e("v_cvt_pk_bf16_f32 v8, v8, v9")
e("s_mov_b32 exec_hi, 0")
e("global_store_dword v7, v8, s[34:35]")
e("s_mov_b64 exec, -1")
e.label(lend)
e.raw("L_END:")
e("s_endpgm")

e.raw('.section .rodata,"a"')
e.raw(".p2align 6")
e.raw(f".amdhsa_kernel {NAME}_kernel")
e.raw("  .amdhsa_next_free_vgpr 168")
e.raw("  .amdhsa_next_free_sgpr 102")
e.raw("  .amdhsa_accum_offset 168")
e.raw("  .amdhsa_group_segment_fixed_size 0")
e.raw("  .amdhsa_kernarg_size 96")
e.raw("  .amdhsa_user_sgpr_count 2")
e.raw("  .amdhsa_user_sgpr_kernarg_segment_ptr 1")
e.raw("  .amdhsa_system_sgpr_workgroup_id_x 1")
e.raw(".end_amdhsa_kernel")

open(OUT, "w").write(e.text())
print("wrote", OUT, "lines", len(e.lines), "nops", e.nops_inserted)
```

```python
import sys, struct
from emit import Emitter, VmQueue

NAME = "sequential_preLN__sliding_block_cached__swiglu_ffn__decode"
OUT = sys.argv[1] if len(sys.argv) > 1 else f"cdna_kernels/{NAME}.s"

OPT = dict(
    kv_nt=" nt",
    w_nt="",
    f_nt="",
    NB=24,
    sleep=2,
    stamp=0,
)
for a in sys.argv[2:]:
    k, v = a.split("=")
    OPT[k] = int(v) if v.lstrip("-").isdigit() else ((" " + v) if v else "")


def f32(x):
    return "0x%08x" % struct.unpack("<I", struct.pack("<f", x))[0]


LOG2E = f32(1.4426950408889634)
CSC = f32(128 ** -0.5)
EPS = f32(1e-5)

REC_SZ = 4096
OX_OFF = 2048
ML_OFF = 2304
H_OFF = 0x100000
ACT_OFF = 0x101000
WS_SZ = 0x104000
OOB = 0x7FFF0000

L_XN = 0
L_QP = 2048
L_ST = 4096
L_GS = 4160
L_OP = 4352
L_YP = 8448
L_DP = 16640
L_FW = 24832
LDS_BYTES = 24832 + 45056

e = Emitter()
lab_id = [0]


def newlab(p):
    lab_id[0] += 1
    return f"L_{p}_{lab_id[0]}"


def allreduce(v, op, t):
    for r in (8, 4, 2, 1):
        e(f"{op} v{v}, v{v}, v{v} row_ror:{r}")
    xrow_reduce(v, op, t)


def xrow_reduce(v, op, t):
    e(f"v_mov_b32 v{t}, v{v}")
    e(f"v_permlane16_swap_b32 v{v}, v{t}")
    e(f"{op} v{v}, v{v}, v{t}")
    e(f"v_mov_b32 v{t}, v{v}")
    e(f"v_permlane32_swap_b32 v{v}, v{t}")
    e(f"{op} v{v}, v{v}, v{t}")


def rnd1(v, t):
    e(f"v_cvt_pk_bf16_f32 v{t}, v{v}, v{v}")
    e(f"v_lshlrev_b32 v{v}, 16, v{t}")


def rnd2(a, b, t):
    e(f"v_cvt_pk_bf16_f32 v{t}, v{a}, v{b}")
    e(f"v_lshlrev_b32 v{a}, 16, v{t}")
    e(f"v_and_b32 v{b}, 0xffff0000, v{t}")


def halving8(a):
    for i in range(4):
        e(f"v_permlane32_swap_b32 v{a+i}, v{a+4+i}")
    for i in range(4):
        e(f"v_add_f32 v{a+i}, v{a+i}, v{a+4+i}")
    e(f"v_permlane16_swap_b32 v{a}, v{a+2}")
    e(f"v_permlane16_swap_b32 v{a+1}, v{a+3}")
    e(f"v_add_f32 v{a}, v{a}, v{a+2}")
    e(f"v_add_f32 v{a+1}, v{a+1}, v{a+3}")


def canon(v, vnan):
    e(f"v_cmp_eq_u32 vcc, -1, v{v}")
    e(f"v_cndmask_b32 v{v}, v{v}, v{vnan}, vcc")


def maxu_tree(regs, t):
    regs = list(regs)
    if len(regs) == 1:
        e(f"v_mov_b32 v{t}, v{regs[0]}")
        return
    if len(regs) == 2:
        e(f"v_max_u32 v{t}, v{regs[0]}, v{regs[1]}")
        return
    e(f"v_max3_u32 v{t}, v{regs[0]}, v{regs[1]}, v{regs[2]}")
    k = 3
    while k < len(regs):
        if k + 1 < len(regs):
            e(f"v_max3_u32 v{t}, v{t}, v{regs[k]}, v{regs[k+1]}")
            k += 2
        else:
            e(f"v_max_u32 v{t}, v{t}, v{regs[k]}")
            k += 1


def poll(load_fn, regs, t, lanes_mask=None):
    lp = newlab("poll")
    dn = newlab("polldone")
    e("s_mov_b32 s14, 0")
    e.label(lp)
    load_fn()
    e("s_waitcnt vmcnt(0)")
    maxu_tree(regs, t)
    e(f"v_cmp_eq_u32 vcc, -1, v{t}")
    if lanes_mask is not None:
        e(f"s_and_b32 vcc_lo, vcc_lo, {lanes_mask[0]}")
        e(f"s_and_b32 vcc_hi, vcc_hi, {lanes_mask[1]}")
    e("s_nop 4")
    e(f"s_cbranch_vccz {dn}")
    e("s_add_u32 s14, s14, 1")
    e("s_cmp_gt_u32 s14, 400000")
    e(f"s_cbranch_scc1 {dn}")
    e(f"s_sleep {OPT['sleep']}")
    e(f"s_branch {lp}")
    e.label(dn)


def stamp(idx, cond_wave=0):
    if not OPT["stamp"]:
        return
    l = newlab("st")
    e(f"s_cmp_eq_u32 s3, {cond_wave}")
    e(f"s_cbranch_scc0 {l}")
    e("s_memrealtime s[98:99]")
    e("s_lshl_b32 s100, s2, 8")
    e(f"s_add_u32 s100, s100, {0x200000 + idx*8}")
    e("s_waitcnt lgkmcnt(0)")
    e("v_mov_b32 v164, s98")
    e("v_mov_b32 v165, s99")
    e("v_mov_b32 v166, s100")
    e("s_mov_b64 exec, 1")
    e("global_store_dwordx2 v166, v[164:165], s[38:39]")
    e("s_mov_b64 exec, -1")
    e.label(l)


hdr = open(f"cdna_kernels/{NAME}.s.ref").read().split("\n")
head_lines = []
for ln in hdr:
    if ln.startswith("; @launch"):
        head_lines.append(f"; @launch grid=(256,1,1) block=(768,1,1) lds={LDS_BYTES}")
    elif ln.startswith(";"):
        head_lines.append(ln)
    else:
        break
e.raw("\n".join(head_lines))
e.raw('.amdgcn_target "amdgcn-amd-amdhsa--gfx950"')
e.raw(".text")
e.raw(f".globl {NAME}_kernel")
e.raw(".p2align 8")
e.raw(f".type {NAME}_kernel,@function")
e.raw(f"{NAME}_kernel:")

e("s_cmp_ge_u32 s2, 256")
e("s_cbranch_scc1 L_END")
e("s_load_dwordx16 s[16:31], s[0:1], 0")
e("s_load_dwordx8 s[32:39], s[0:1], 64")
e("v_lshrrev_b32 v4, 6, v0")
e("v_and_b32 v1, 63, v0")
e("v_readfirstlane_b32 s3, v4")
e("v_lshrrev_b32 v2, 4, v1")
e("v_and_b32 v3, 15, v1")
e("s_and_b32 s4, s2, 7")
e("s_lshr_b32 s5, s2, 3")
e("s_and_b32 s6, s5, 3")
e("s_lshl_b32 s6, s6, 3")
e("s_add_u32 s6, s6, s4")
e("s_lshr_b32 s7, s2, 5")
e("s_lshr_b32 s8, s7, 1")
e("s_and_b32 s9, s7, 1")
e(f"s_mov_b32 s96, {LOG2E}")
e(f"s_mov_b32 s97, {CSC}")
e("s_cmp_lt_u32 s3, 4")
e("s_cbranch_scc1 L_SERVICE")

NB = OPT["NB"]
S0 = 16
Q0 = 48
A0 = 52
T0 = 60
SL0 = 68


def slot(n):
    return SL0 + 4 * (n % NB)


vq = VmQueue(e)
e("s_sub_u32 s3, s3, 4")
e("s_lshl_b32 s10, s8, 5")
e("s_add_u32 s10, s10, s6")
e("s_lshl_b32 s10, s10, 21")
e("s_lshl_b32 s11, s9, 18")
e("s_add_u32 s10, s10, s11")
e("s_add_u32 s10, s10, 0x180000")
e("s_lshl_b32 s11, s3, 10")
e("v_lshl_add_u32 v4, v1, 4, s11")
e("s_waitcnt lgkmcnt(0)")
e("s_add_u32 s40, s18, s10")
e("s_addc_u32 s41, s19, 0")
e("s_and_b32 s41, s41, 0xffff")
e("s_mov_b32 s42, 0x40000")
e("s_mov_b32 s43, 0x20000")
e("s_add_u32 s44, s20, s10")
e("s_addc_u32 s45, s21, 0")
e("s_and_b32 s45, s45, 0xffff")
e("s_mov_b32 s46, 0x40000")
e("s_mov_b32 s47, 0x20000")


def stream_load(n):
    srd = "s[40:43]" if n < 32 else "s[44:47]"
    i = n % 32
    e(f"s_mov_b32 s10, {i*8192}")
    s = slot(n)
    e(f"buffer_load_dwordx4 v[{s}:{s+3}], v4, {srd}, s10 offen{OPT['kv_nt']}")
    vq.issue(("L", n))


for n in range(NB):
    stream_load(n)
stamp(0)
e(f"v_lshlrev_b32 v5, 5, v3")
e("s_barrier")
stamp(1)
for w in range(4):
    e(f"ds_read_b128 v[{T0}:{T0+3}], v5 offset:{L_QP + w*512}")
    e(f"ds_read_b128 v[{T0+4}:{T0+7}], v5 offset:{L_QP + w*512 + 16}")
    e("s_waitcnt lgkmcnt(0)")
    if w == 0:
        for k in range(8):
            e(f"v_mov_b32 v{A0+k}, v{T0+k}")
    else:
        for k in range(8):
            e(f"v_add_f32 v{A0+k}, v{A0+k}, v{T0+k}")
for t in range(4):
    e(f"v_cvt_pk_bf16_f32 v{Q0+t}, v{A0+2*t}, v{A0+2*t+1}")

for n0 in range(0, 32, 4):
    vq.wait(("L", n0 + 3))
    for t in range(4):
        for k in range(4):
            s = slot(n0 + k)
            d = S0 + n0 + k
            if t == 0:
                e(f"v_dot2_f32_bf16 v{d}, v{s}, v{Q0}, 0")
            else:
                e(f"v_dot2c_f32_bf16 v{d}, v{s+t}, v{Q0+t}")
    for k in range(4):
        if n0 + k + NB < 64:
            stream_load(n0 + k + NB)
    for r in (8, 4, 2, 1):
        for k in range(4):
            d = S0 + n0 + k
            e(f"v_add_f32 v{d}, v{d}, v{d} row_ror:{r}")
    for k in (0, 2):
        a, b = S0 + n0 + k, S0 + n0 + k + 1
        rnd2(a, b, T0 + k)
    for k in range(4):
        d = S0 + n0 + k
        e(f"v_mul_f32 v{d}, s97, v{d}")
    for k in (0, 2):
        a, b = S0 + n0 + k, S0 + n0 + k + 1
        rnd2(a, b, T0 + k)

M = T0
L = T0 + 1
e(f"v_max3_f32 v{M}, v{S0}, v{S0+1}, v{S0+2}")
for k in range(3, 31, 2):
    e(f"v_max3_f32 v{M}, v{M}, v{S0+k}, v{S0+k+1}")
e(f"v_max_f32 v{M}, v{M}, v{S0+31}")
xrow_reduce(M, "v_max_f32", T0 + 2)
e(f"v_mov_b32 v{L}, 0")
for k in range(0, 32, 4):
    for j in range(4):
        e(f"v_sub_f32 v{S0+k+j}, v{S0+k+j}, v{M}")
    for j in range(4):
        e(f"v_mul_f32 v{S0+k+j}, s96, v{S0+k+j}")
    for j in range(4):
        e(f"v_exp_f32 v{S0+k+j}, v{S0+k+j}")
    for j in range(4):
        e(f"v_add_f32 v{L}, v{L}, v{S0+k+j}")
    for j in range(4):
        e(f"v_cvt_pk_bf16_f32 v{S0+k+j}, v{S0+k+j}, 0")
xrow_reduce(L, "v_add_f32", T0 + 2)
e("s_lshl_b32 s11, s3, 3")
e("v_mov_b32 v6, s11")
e(f"ds_write_b64 v6, v[{M}:{L}] offset:{L_ST}")
stamp(2)
for k in range(8):
    e(f"v_mov_b32 v{A0+k}, 0")
for n in range(32, 64):
    i = n - 32
    if i % 2 == 0:
        vq.wait(("L", n + 1))
    s = slot(n)
    ph = T0 + 4 + (i % 4)
    e(f"v_lshlrev_b32 v{ph}, 16, v{S0+i}")
    for t in range(4):
        e(f"v_dot2c_f32_bf16 v{A0+2*t}, v{s+t}, v{S0+i}")
        e(f"v_dot2c_f32_bf16 v{A0+2*t+1}, v{s+t}, v{ph}")
    if n + NB < 64:
        stream_load(n + NB)
halving8(A0)
e("s_lshl_b32 s11, s3, 9")
e("v_lshl_add_u32 v6, v2, 3, v5")
e("v_add_u32 v6, s11, v6")
e(f"ds_write_b64 v6, v[{A0}:{A0+1}] offset:{L_OP}")
e("s_waitcnt lgkmcnt(0)")
stamp(4)
e("s_barrier")
e("s_endpgm")

e.fence()
e.raw("L_SERVICE:")
vq = VmQueue(e)
W0 = 32
F0 = 96
e("s_lshl_b32 s92, s8, 6")
e("s_lshl_b32 s10, s6, 1")
e("s_add_u32 s92, s92, s10")
e("s_add_u32 s93, s92, s9")
e("s_xor_b32 s10, s9, 1")
e("s_add_u32 s92, s92, s10")
e("s_lshl_b32 s93, s93, 12")
e("s_lshl_b32 s92, s92, 12")
e("s_mov_b32 s94, 0")
e("s_mul_i32 s95, s4, 11")
e("s_add_u32 s95, s95, s5")
e("s_cmp_lt_u32 s5, 11")
e("s_cselect_b32 s10, 1, 0")
e("s_cmp_lt_u32 s95, 86")
e("s_cselect_b32 s11, 1, 0")
e("s_and_b32 s94, s10, s11")
e("s_sub_u32 s10, s5, 11")
e("s_cmp_lt_u32 s10, 4")
lr = newlab("role")
e(f"s_cbranch_scc0 {lr}")
e("s_mov_b32 s94, 2")
e("s_lshl_b32 s95, s4, 2")
e("s_add_u32 s95, s95, s10")
e.label(lr)
e("v_lshlrev_b32 v4, 4, v0")
e("v_add_u32 v4, s93, v4")
e(f"v_mov_b32 v5, {OOB}")
e("v_cmp_gt_u32 vcc, 160, v0")
e("v_cndmask_b32 v6, v5, v4, vcc")
e("s_lshr_b32 s10, s2, 6")
e("s_lshl_b32 s10, s10, 10")
e("s_and_b32 s11, s2, 63")
e("s_lshl_b32 s11, s11, 4")
e("s_add_u32 s12, s10, s11")
e(f"s_add_u32 s13, s12, {H_OFF}")
e("v_mov_b32 v4, s13")
e("v_cmp_eq_u32 vcc, 0xa0, v0")
e("v_cndmask_b32 v6, v6, v4, vcc")
e("s_lshl_b32 s10, s95, 5")
e(f"s_add_u32 s10, s10, {ACT_OFF}")
e("s_cmp_eq_u32 s94, 1")
e(f"s_cselect_b32 s10, s10, {OOB}")
e("v_subrev_u32 v7, 0xc0, v0")
e("v_lshrrev_b32 v4, 1, v7")
e("v_mul_u32_u24 v4, 2752, v4")
e("v_and_b32 v8, 1, v7")
e("v_lshl_add_u32 v4, v8, 4, v4")
e("v_add_u32 v4, s10, v4")
e("v_cmp_gt_u32 vcc, 8, v7")
e("v_cndmask_b32 v6, v6, v4, vcc")
for k in range(8, 12):
    e(f"v_mov_b32 v{k}, -1")
e("s_lshl_b32 s10, s8, 10")
e("v_lshl_add_u32 v5, v1, 4, s10")
e("s_waitcnt lgkmcnt(0)")
e("s_mov_b32 s48, s38")
e("s_and_b32 s49, s39, 0xffff")
e(f"s_mov_b32 s50, {WS_SZ}")
e("s_mov_b32 s51, 0x20000")
e("s_mov_b32 s40, s22")
e("s_and_b32 s41, s23, 0xffff")
e("s_mov_b32 s42, 0x400000")
e("s_mov_b32 s43, 0x20000")
e("s_mov_b32 s44, s24")
e("s_and_b32 s45, s25, 0xffff")
e("s_mov_b32 s46, 0x400000")
e("s_mov_b32 s47, 0x20000")
e("buffer_store_dwordx4 v[8:11], v6, s[48:51], 0 offen sc1")
vq.issue("clr")
e("global_load_dwordx4 v[12:15], v5, s[16:17]")
vq.issue("x")
e("s_lshl_b32 s10, s3, 20")
e("s_lshl_b32 s11, s6, 8")
e("s_add_u32 s10, s10, s11")
e("v_lshlrev_b32 v4, 18, v2")
e("v_lshl_add_u32 v4, v3, 4, v4")
e("v_add_u32 v4, s10, v4")
for i in range(32):
    e(f"s_mov_b32 s10, {i*8192}")
    e(f"buffer_load_dwordx4 v[{W0+4*i}:{W0+4*i+3}], v4, s[40:43], s10 offen{OPT['w_nt']}")
    vq.issue(("wq", i))
e("v_lshl_add_u32 v5, v2, 2, s12")
e("global_load_dword v31, v5, s[16:17]")
vq.issue("xr")
vq.wait("x")
X = 16
for t in range(4):
    e(f"v_lshlrev_b32 v{X+2*t}, 16, v{12+t}")
    e(f"v_and_b32 v{X+2*t+1}, 0xffff0000, v{12+t}")


def ln_core(X, n, red, inv_n, vs, vt, vmb, vden, vr):
    e(f"v_add_f32 v{vs}, v{X}, v{X+1}")
    for k in range(2, n):
        e(f"v_add_f32 v{vs}, v{vs}, v{X+k}")
    red(vs)
    e(f"v_mul_f32 v{vs}, {inv_n}, v{vs}")
    e(f"v_mov_b32 v{vmb}, v{vs}")
    rnd1(vmb, vt)
    e(f"v_sub_f32 v{vt}, v{X}, v{vs}")
    e(f"v_mul_f32 v{vden}, v{vt}, v{vt}")
    for k in range(1, n):
        e(f"v_sub_f32 v{vt}, v{X+k}, v{vs}")
        e(f"v_fmac_f32 v{vden}, v{vt}, v{vt}")
    red(vden)
    e(f"v_mul_f32 v{vden}, {inv_n}, v{vden}")
    rnd1(vden, vt)
    e(f"v_add_f32 v{vden}, {EPS}, v{vden}")
    rnd1(vden, vt)
    e(f"v_sqrt_f32 v{vden}, v{vden}")
    rnd1(vden, vt)
    e(f"v_rcp_f32 v{vr}, v{vden}")


def ln_apply(v, vmb, vden, vr, t1, t2):
    e(f"v_sub_f32 v{v}, v{v}, v{vmb}")
    rnd1(v, t1)
    e(f"v_mul_f32 v{t1}, v{v}, v{vr}")
    e(f"v_fma_f32 v{t2}, -v{t1}, v{vden}, v{v}")
    e(f"v_fma_f32 v{v}, v{t2}, v{vr}, v{t1}")


INV512 = f32(1.0 / 512)
ln_core(X, 8, lambda v: allreduce(v, "v_add_f32", 7), INV512, 24, 25, 26, 27, 28)
for k in range(8):
    ln_apply(X + k, 26, 27, 28, 24, 25)
for k in range(0, 8, 2):
    rnd2(X + k, X + k + 1, 24)
e("v_lshlrev_b32 v5, 5, v1")
e(f"ds_write_b128 v5, v[{X}:{X+3}] offset:{L_XN}")
e(f"ds_write_b128 v5, v[{X+4}:{X+7}] offset:{L_XN+16}")
e("s_lshl_b32 s10, s3, 9")
e("v_lshl_add_u32 v5, v2, 7, s10")
e("s_waitcnt lgkmcnt(0)")
QA = 8
for k in range(8):
    e(f"v_mov_b32 v{QA+k}, 0")
for i in range(32):
    if i % 4 == 0:
        e(f"ds_read_b128 v[{X}:{X+3}], v5 offset:{L_XN + i*4}")
        vq.wait(("wq", i + 3))
        e("s_waitcnt lgkmcnt(0)")
        for k in range(4):
            e(f"v_lshrrev_b32 v{X+4+k}, 16, v{X+k}")
    s = W0 + 4 * i
    for t in range(4):
        e(f"v_dot2c_f32_bf16 v{QA+2*t}, v{s+t}, v{X+4+(i%4)}")
        e(f"v_dot2c_f32_bf16 v{QA+2*t+1}, v{s+t}, v{X+(i%4)}")
halving8(QA)
e("v_lshlrev_b32 v5, 5, v3")
e("v_lshl_add_u32 v5, v2, 3, v5")
e("s_lshl_b32 s10, s3, 9")
e("v_add_u32 v6, s10, v5")
e(f"ds_write_b64 v6, v[{QA}:{QA+1}] offset:{L_QP}")
e("s_waitcnt lgkmcnt(0)")
e("s_barrier")
l1 = newlab("noadd")
e("s_cmp_eq_u32 s3, 0")
e(f"s_cbranch_scc0 {l1}")
e("v_mov_b32 v6, 0")
e("v_mov_b32 v7, 1")
e("s_mov_b64 exec, 1")
e("global_atomic_add v6, v7, s[36:37]")
e("s_mov_b64 exec, -1")
e.label(l1)
lgu = newlab("ldgu")
ldn = newlab("lddn")
lfe = newlab("ldend")
e("s_lshl_b32 s10, s3, 4")
e("s_mul_i32 s10, s10, 704")
e("v_lshl_add_u32 v7, v1, 4, s10")
e("s_cmp_eq_u32 s94, 1")
e(f"s_cbranch_scc1 {lgu}")
e("s_cmp_eq_u32 s94, 2")
e(f"s_cbranch_scc1 {ldn}")
e(f"s_branch {lfe}")
e.label(lgu)
e("s_mov_b32 s52, s28")
e("s_and_b32 s53, s29, 0xffff")
e(f"s_mov_b32 s54, {512*2752}")
e("s_mov_b32 s55, 0x20000")
e("s_mov_b32 s56, s30")
e("s_and_b32 s57, s31, 0xffff")
e(f"s_mov_b32 s58, {512*2752}")
e("s_mov_b32 s59, 0x20000")
e("s_lshl_b32 s10, s3, 7")
e("v_lshl_add_u32 v4, v2, 3, s10")
e("v_mul_u32_u24 v4, 2752, v4")
e("s_lshl_b32 s10, s95, 4")
e("v_add_u32 v5, s10, v3")
e("v_lshl_add_u32 v4, v5, 1, v4")
for kk in range(4):
    for t in range(4):
        for hi in range(2):
            e(f"s_mov_b32 s10, {(kk*32+2*t+hi)*2752}")
            e(f"buffer_load_ushort v{W0+32*hi+kk*4+t}, v4, s[52:55], s10 offen{OPT['f_nt']}")
            e(f"buffer_load_ushort v{W0+32*hi+16+kk*4+t}, v4, s[56:59], s10 offen{OPT['f_nt']}")
e("s_waitcnt vmcnt(0)")
for k in range(32):
    e(f"v_lshl_or_b32 v{W0+k}, v{W0+32+k}, 16, v{W0+k}")
for k in range(8):
    e(f"ds_write_b128 v7, v[{W0+4*k}:{W0+4*k+3}] offset:{L_FW + 1024*k}")
e(f"s_branch {lfe}")
e.label(ldn)
e("s_mov_b32 s52, s32")
e("s_and_b32 s53, s33, 0xffff")
e(f"s_mov_b32 s54, {1376*1024}")
e("s_mov_b32 s55, 0x20000")
e("s_mul_i32 s10, s3, 352")
e("v_lshl_add_u32 v4, v2, 3, s10")
e("v_lshlrev_b32 v4, 10, v4")
e("s_lshl_b32 s10, s95, 4")
e("v_add_u32 v5, s10, v3")
e("v_lshl_add_u32 v4, v5, 1, v4")
for kk in range(11):
    for t in range(4):
        for hi in range(2):
            e(f"s_mov_b32 s10, {(kk*32+2*t+hi)*1024}")
            e(f"buffer_load_ushort v{W0+44*hi+kk*4+t}, v4, s[52:55], s10 offen{OPT['f_nt']}")
e("s_waitcnt vmcnt(0)")
for k in range(44):
    e(f"v_lshl_or_b32 v{W0+k}, v{W0+44+k}, 16, v{W0+k}")
for k in range(11):
    e(f"ds_write_b128 v7, v[{W0+4*k}:{W0+4*k+3}] offset:{L_FW + 1024*k}")
e.label(lfe)
e("s_waitcnt lgkmcnt(0)")
e("s_lshl_b32 s10, s6, 7")
e("s_lshl_b32 s11, s3, 5")
e("s_add_u32 s10, s10, s11")
e("s_lshl_b32 s10, s10, 10")
e("v_lshl_add_u32 v4, v1, 4, s10")
for r in range(32):
    if r % 4 == 0:
        e(f"s_mov_b32 s10, {(r//4)*4096}")
    e(f"buffer_load_dwordx4 v[{W0+4*r}:{W0+4*r+3}], v4, s[44:47], s10 offen offset:{(r%4)*1024}{OPT['w_nt']}")
e("v_mov_b32 v30, 0x7fc00000")
e("v_mov_b32 v29, 0x7fc07fc0")
e("v_mov_b32 v6, 0")
lp = newlab("cnt")
dn = newlab("cntdone")
e("s_mov_b32 s14, 0")
e.label(lp)
e("global_load_dword v7, v6, s[36:37] sc1")
e("s_waitcnt vmcnt(0)")
e("v_readfirstlane_b32 s10, v7")
e("s_nop 3")
e("s_cmp_ge_u32 s10, 256")
e(f"s_cbranch_scc1 {dn}")
e("s_add_u32 s14, s14, 1")
e("s_cmp_gt_u32 s14, 400000")
e(f"s_cbranch_scc1 {dn}")
e(f"s_sleep 8")
e(f"s_branch {lp}")
e.label(dn)
e("v_and_b32 v4, 31, v1")
e("s_lshl_b32 s10, s3, 7")
e("v_lshl_add_u32 v5, v4, 2, s10")
e("s_barrier")
stamp(5)
for k in range(4):
    e(f"ds_read_b128 v[{8+4*k}:{11+4*k}], v6 offset:{L_ST+16*k}")
OW = 160
for w in range(8):
    e(f"ds_read_b32 v{OW+w}, v5 offset:{L_OP + w*512}")
e("s_waitcnt lgkmcnt(0)")
e("v_max3_f32 v24, v8, v10, v12")
e("v_max3_f32 v24, v24, v14, v16")
e("v_max3_f32 v24, v24, v18, v20")
e("v_max_f32 v24, v24, v22")
for k in range(8):
    e(f"v_sub_f32 v{8+2*k}, v{8+2*k}, v24")
for k in range(8):
    e(f"v_mul_f32 v{8+2*k}, s96, v{8+2*k}")
for k in range(8):
    e(f"v_exp_f32 v{8+2*k}, v{8+2*k}")
e("v_mul_f32 v25, v8, v9")
e(f"v_mul_f32 v26, v8, v{OW}")
for k in range(1, 8):
    e(f"v_fmac_f32 v25, v{8+2*k}, v{9+2*k}")
    e(f"v_fmac_f32 v26, v{8+2*k}, v{OW+k}")
e("v_rcp_f32 v27, v25")
e("v_mul_f32 v26, v26, v27")
e("v_cvt_pk_bf16_f32 v26, v26, 0")
YA = 8
for k in range(8):
    e(f"v_mov_b32 v{YA+k}, 0")
for half_ in range(2):
    for r in range(16):
        e(f"v_readlane_b32 s{60+r}, v26, {half_*16+r}")
    for r in range(16):
        e(f"s_lshl_b32 s{76+r}, s{60+r}, 16")
    for r in range(16):
        s_ = W0 + 4 * (half_ * 16 + r)
        for t in range(4):
            e(f"v_dot2c_f32_bf16 v{YA+2*t}, s{60+r}, v{s_+t}")
            e(f"v_dot2c_f32_bf16 v{YA+2*t+1}, s{76+r}, v{s_+t}")
e("s_lshl_b32 s10, s3, 11")
e("v_lshl_add_u32 v5, v1, 5, s10")
e(f"ds_write_b128 v5, v[{YA}:{YA+3}] offset:{L_YP}")
e(f"ds_write_b128 v5, v[{YA+4}:{YA+7}] offset:{L_YP+16}")
e("s_waitcnt lgkmcnt(0)")
e("s_barrier")
stamp(7)
lred = newlab("red")
lrole = newlab("role2")
lml = newlab("ml")
e("s_cmp_eq_u32 s3, 0")
e(f"s_cbranch_scc1 {lred}")
e("s_cmp_lt_u32 s3, 2")
e(f"s_cbranch_scc1 {lml}")
e("s_sub_u32 s10, s3, 2")
e("s_lshl_b32 s10, s10, 10")
e("v_lshl_add_u32 v5, v1, 4, s10")
for w in range(4):
    e(f"ds_read_b128 v[{8+4*w}:{11+4*w}], v5 offset:{L_YP + w*2048}")
e("s_waitcnt lgkmcnt(0)")
for k in range(4):
    e(f"v_add_f32 v{8+k}, v{8+k}, v{12+k}")
    e(f"v_add_f32 v{16+k}, v{16+k}, v{20+k}")
for k in range(4):
    e(f"v_add_f32 v{8+k}, v{8+k}, v{16+k}")
for k in range(4):
    canon(8 + k, 30)
e("v_add_u32 v5, s93, v5")
e("buffer_store_dwordx4 v[8:11], v5, s[48:51], 0 offen sc1")
e(f"s_branch {lrole}")
e.label(lml)
canon(24, 30)
canon(25, 30)
e(f"s_add_u32 s10, s93, {ML_OFF}")
e("v_mov_b32 v6, s10")
e("s_mov_b64 exec, 1")
e("buffer_store_dwordx2 v[24:25], v6, s[48:51], 0 offen sc1")
e("s_mov_b64 exec, -1")
e(f"s_branch {lrole}")
e.label(lred)
e("s_lshr_b32 s10, s2, 6")
e("s_lshl_b32 s10, s10, 18")
e("v_lshl_add_u32 v6, v1, 12, s10")
e("s_and_b32 s11, s2, 63")
e("s_lshl_b32 s11, s11, 5")
e("v_add_u32 v5, s11, v6")


def red_loads():
    e("buffer_load_dwordx4 v[8:11], v5, s[48:51], 0 offen sc1")
    e("buffer_load_dwordx4 v[12:15], v5, s[48:51], 0 offen offset:16 sc1")
    e(f"buffer_load_dwordx2 v[16:17], v6, s[48:51], 0 offen offset:{ML_OFF} sc1")


poll(red_loads, range(8, 18), 18)
stamp(8)
e("v_mov_b32_dpp v18, v16 quad_perm:[1,0,3,2] row_mask:0xf bank_mask:0xf")
e("v_mov_b32_dpp v19, v17 quad_perm:[1,0,3,2] row_mask:0xf bank_mask:0xf")
e("v_max_f32 v20, v16, v18")
e("v_sub_f32 v16, v16, v20")
e("v_sub_f32 v18, v18, v20")
e("v_mul_f32 v16, s96, v16")
e("v_mul_f32 v18, s96, v18")
e("v_exp_f32 v16, v16")
e("v_exp_f32 v18, v18")
e("v_mul_f32 v16, v16, v17")
e("v_mul_f32 v18, v18, v19")
e("v_add_f32 v18, v16, v18")
e("v_rcp_f32 v18, v18")
e("v_mul_f32 v16, v16, v18")
for k in range(8):
    e(f"v_mul_f32 v{8+k}, v{8+k}, v16")
halving8(8)
for r in (8, 4, 2, 1):
    e(f"v_add_f32 v8, v8, v8 row_ror:{r}")
    e(f"v_add_f32 v9, v9, v9 row_ror:{r}")
rnd2(8, 9, 16)
e("v_lshlrev_b32 v10, 16, v31")
e("v_and_b32 v11, 0xffff0000, v31")
e("v_add_f32 v8, v8, v10")
e("v_add_f32 v9, v9, v11")
e("v_cvt_pk_bf16_f32 v8, v8, v9")
canon(8, 29)
e("v_lshl_add_u32 v5, v2, 2, s13")
e("s_mov_b32 exec_lo, 0x00010001")
e("s_mov_b32 exec_hi, 0x00010001")
e("buffer_store_dword v8, v5, s[48:51], 0 offen sc1")
e("s_mov_b64 exec, -1")
e.label(lrole)
lgu2 = newlab("gu")
ldn2 = newlab("dn")
e("s_lshl_b32 s10, s3, 4")
e("s_mul_i32 s10, s10, 704")
e("v_lshl_add_u32 v7, v1, 4, s10")
e("s_cmp_eq_u32 s94, 1")
e(f"s_cbranch_scc1 {lgu2}")
e("s_cmp_eq_u32 s94, 2")
e(f"s_cbranch_scc1 {ldn2}")
e("s_endpgm")

e.label(lgu2)
HS = 32
HF = 48
HX = 64
for k in range(8):
    e(f"ds_read_b128 v[{F0+4*k}:{F0+4*k+3}], v7 offset:{L_FW + 1024*k}")
e("v_and_b32 v4, 3, v1")
e("v_lshrrev_b32 v5, 2, v1")
e("v_lshlrev_b32 v4, 10, v4")
e("v_lshl_add_u32 v5, v5, 6, v4")
e(f"v_add_u32 v5, {H_OFF}, v5")
e("s_lshl_b32 s10, s3, 8")
e(f"s_add_u32 s10, s10, {H_OFF}")
e("v_lshl_add_u32 v6, v2, 4, v4")
e("v_add_u32 v6, s10, v6")


def h_loads():
    for k in range(4):
        e(f"buffer_load_dwordx4 v[{HS+4*k}:{HS+4*k+3}], v5, s[48:51], 0 offen offset:{16*k} sc1")
    for k in range(4):
        e(f"buffer_load_dwordx4 v[{HF+4*k}:{HF+4*k+3}], v6, s[48:51], 0 offen offset:{64*k} sc1")


poll(h_loads, range(HS, HS + 32), 7)
stamp(9)
for k in range(16):
    e(f"v_lshlrev_b32 v{HX+2*k}, 16, v{HS+k}")
    e(f"v_and_b32 v{HX+2*k+1}, 0xffff0000, v{HS+k}")


def red_b4(v):
    e(f"v_add_f32 v{v}, v{v}, v{v} row_ror:8")
    e(f"v_add_f32 v{v}, v{v}, v{v} row_ror:4")
    xrow_reduce(v, "v_add_f32", 7)


ln_core(HX, 32, red_b4, INV512, 24, 25, 26, 27, 28)
for k in range(16):
    e(f"v_lshlrev_b32 v{HX+2*k}, 16, v{HF+k}")
    e(f"v_and_b32 v{HX+2*k+1}, 0xffff0000, v{HF+k}")
for k in range(32):
    ln_apply(HX + k, 26, 27, 28, 24, 25)
for k in range(16):
    e(f"v_cvt_pk_bf16_f32 v{HF+k}, v{HX+2*k}, v{HX+2*k+1}")
e("s_waitcnt lgkmcnt(0)")
for kk in range(4):
    c = "0" if kk == 0 else "v[8:11]"
    e(f"v_mfma_f32_16x16x32_bf16 v[8:11], v[{HF+4*kk}:{HF+4*kk+3}], v[{F0+4*kk}:{F0+4*kk+3}], {c}")
for kk in range(4):
    c = "0" if kk == 0 else "v[12:15]"
    e(f"v_mfma_f32_16x16x32_bf16 v[12:15], v[{HF+4*kk}:{HF+4*kk+3}], v[{F0+16+4*kk}:{F0+16+4*kk+3}], {c}")
e("s_lshl_b32 s10, s3, 11")
e("v_lshl_add_u32 v5, v1, 4, s10")
e(f"ds_write_b128 v5, v[8:11] offset:{L_DP}")
e(f"ds_write_b128 v5, v[12:15] offset:{L_DP+1024}")
e("s_waitcnt lgkmcnt(0)")
e("s_barrier")
lend = newlab("guend")
e("s_cmp_eq_u32 s3, 0")
e(f"s_cbranch_scc0 {lend}")
e("v_and_b32 v4, 7, v1")
e("v_bfe_u32 v5, v1, 3, 2")
e("v_lshlrev_b32 v6, 5, v4")
e("v_lshl_add_u32 v6, v5, 2, v6")
for w in range(4):
    o = (L_DP + w * 2048) // 4
    e(f"v_add_u32 v7, {L_DP + w*2048}, v6")
    e(f"ds_read2_b32 v[{8+2*w}:{9+2*w}], v7 offset0:0 offset1:4")
    e(f"v_add_u32 v7, {L_DP + w*2048 + 1024}, v6")
    e(f"ds_read2_b32 v[{16+2*w}:{17+2*w}], v7 offset0:0 offset1:4")
e("s_waitcnt lgkmcnt(0)")
for base in (8, 16):
    for k in range(2):
        e(f"v_add_f32 v{base+k}, v{base+k}, v{base+2+k}")
        e(f"v_add_f32 v{base+4+k}, v{base+4+k}, v{base+6+k}")
    for k in range(2):
        e(f"v_add_f32 v{base+k}, v{base+k}, v{base+4+k}")
rnd2(8, 9, 24)
rnd2(16, 17, 24)
for k in range(2):
    e(f"v_mul_f32 v{10+k}, s96, v{8+k}")
    e(f"v_sub_f32 v{10+k}, 0, v{10+k}")
    e(f"v_exp_f32 v{10+k}, v{10+k}")
    e(f"v_add_f32 v{10+k}, 1.0, v{10+k}")
    e(f"v_rcp_f32 v{12+k}, v{10+k}")
    e(f"v_mul_f32 v{14+k}, v{8+k}, v{12+k}")
    e(f"v_fma_f32 v{18+k}, -v{14+k}, v{10+k}, v{8+k}")
    e(f"v_fma_f32 v{18+k}, v{18+k}, v{12+k}, v{14+k}")
    e(f"v_cmp_class_f32 vcc, v{18+k}, 3")
    e(f"v_cndmask_b32 v{8+k}, v{18+k}, v{14+k}, vcc")
rnd2(8, 9, 24)
e("v_mul_f32 v8, v8, v16")
e("v_mul_f32 v9, v9, v17")
e("v_cvt_pk_bf16_f32 v8, v8, v9")
canon(8, 29)
e("v_mul_u32_u24 v5, 2752, v5")
e("v_lshl_add_u32 v5, v4, 2, v5")
e("s_lshl_b32 s10, s95, 5")
e(f"s_add_u32 s10, s10, {ACT_OFF}")
e("v_add_u32 v5, s10, v5")
e("s_mov_b32 exec_hi, 0")
e("buffer_store_dword v8, v5, s[48:51], 0 offen sc1")
e("s_mov_b64 exec, -1")
stamp(10)
e.label(lend)
e("s_endpgm")

e.label(ldn2)
AF = 32
for k in range(11):
    e(f"ds_read_b128 v[{F0+4*k}:{F0+4*k+3}], v7 offset:{L_FW + 1024*k}")
e("v_and_b32 v4, 3, v1")
e("v_mul_u32_u24 v4, 2752, v4")
e("v_lshl_add_u32 v4, v2, 4, v4")
e("s_mul_i32 s10, s3, 704")
e(f"s_add_u32 s10, s10, {ACT_OFF}")
e("v_add_u32 v5, s10, v4")
e("v_and_b32 v4, 7, v1")
e("v_bfe_u32 v6, v1, 3, 2")
e("v_lshlrev_b32 v7, 10, v6")
e("v_lshl_add_u32 v7, v4, 2, v7")
e("s_lshl_b32 s10, s95, 5")
e("v_add_u32 v7, s10, v7")
e(f"v_add_u32 v16, {H_OFF}, v7")
e("s_waitcnt lgkmcnt(0)")
lw3 = newlab("w3")
lj = newlab("dj")
e("s_cmp_eq_u32 s3, 3")
e(f"s_cbranch_scc1 {lw3}")


def act_loads(n):
    def f():
        for k in range(n):
            e(f"buffer_load_dwordx4 v[{AF+4*k}:{AF+4*k+3}], v5, s[48:51], 0 offen offset:{64*k} sc1")
        e(f"buffer_load_dword v17, v16, s[48:51], 0 offen sc1")
    return f


poll(act_loads(11), list(range(AF, AF + 44)) + [17], 18)
stamp(11)
e(f"v_mfma_f32_16x16x32_bf16 v[8:11], v[{AF+40}:{AF+43}], v[{F0+40}:{F0+43}], 0")
e(f"s_branch {lj}")
e.label(lw3)
poll(act_loads(10), list(range(AF, AF + 40)) + [17], 18)
for k in range(4):
    e(f"v_mov_b32 v{8+k}, 0")
e.label(lj)
for kk in range(10):
    e(f"v_mfma_f32_16x16x32_bf16 v[8:11], v[{AF+4*kk}:{AF+4*kk+3}], v[{F0+4*kk}:{F0+4*kk+3}], v[8:11]")
e("s_lshl_b32 s10, s3, 10")
e("v_lshl_add_u32 v5, v1, 4, s10")
e(f"ds_write_b128 v5, v[8:11] offset:{L_DP}")
e("s_waitcnt lgkmcnt(0)")
e("s_barrier")
lend = newlab("dnend")
e("s_cmp_eq_u32 s3, 0")
e(f"s_cbranch_scc0 {lend}")
e("v_lshlrev_b32 v5, 5, v4")
e("v_lshl_add_u32 v5, v6, 2, v5")
for w in range(4):
    e(f"v_add_u32 v19, {L_DP + w*1024}, v5")
    e(f"ds_read2_b32 v[{8+2*w}:{9+2*w}], v19 offset0:0 offset1:4")
e("s_waitcnt lgkmcnt(0)")
for k in range(2):
    e(f"v_add_f32 v{8+k}, v{8+k}, v{10+k}")
    e(f"v_add_f32 v{12+k}, v{12+k}, v{14+k}")
for k in range(2):
    e(f"v_add_f32 v{8+k}, v{8+k}, v{12+k}")
rnd2(8, 9, 24)
e("v_lshlrev_b32 v10, 16, v17")
e("v_and_b32 v11, 0xffff0000, v17")
e("v_add_f32 v8, v8, v10")
e("v_add_f32 v9, v9, v11")
e("v_cvt_pk_bf16_f32 v8, v8, v9")
e("s_mov_b32 exec_hi, 0")
e("global_store_dword v7, v8, s[34:35]")
e("s_mov_b64 exec, -1")
stamp(12)
e.label(lend)
e.raw("L_END:")
e("s_endpgm")

e.raw('.section .rodata,"a"')
e.raw(".p2align 6")
e.raw(f".amdhsa_kernel {NAME}_kernel")
e.raw("  .amdhsa_next_free_vgpr 168")
e.raw("  .amdhsa_next_free_sgpr 102")
e.raw("  .amdhsa_accum_offset 168")
e.raw("  .amdhsa_group_segment_fixed_size 0")
e.raw("  .amdhsa_kernarg_size 96")
e.raw("  .amdhsa_user_sgpr_count 2")
e.raw("  .amdhsa_user_sgpr_kernarg_segment_ptr 1")
e.raw("  .amdhsa_system_sgpr_workgroup_id_x 1")
e.raw(".end_amdhsa_kernel")

open(OUT, "w").write(e.text())
print("wrote", OUT, "lines", len(e.lines), "nops", e.nops_inserted)
```

```python
import sys, struct
from emit import Emitter, VmQueue

NAME = "sequential_preLN__sliding_block_cached__swiglu_ffn__decode"
OUT = sys.argv[1] if len(sys.argv) > 1 else f"cdna_kernels/{NAME}.s"

OPT = dict(
    kv_nt=" nt",
    w_nt=" nt",
    f_nt=" nt",
    NB=24,
    sleep=2,
    stamp=0,
    vearly=0,
    cpf=0,
    nowq=0,
    nowo=0,
    wqfirst=1,
)
for a in sys.argv[2:]:
    k, v = a.split("=")
    OPT[k] = int(v) if v.lstrip("-").isdigit() else ((" " + v) if v else "")


def f32(x):
    return "0x%08x" % struct.unpack("<I", struct.pack("<f", x))[0]


LOG2E = f32(1.4426950408889634)
CSC = f32(128 ** -0.5)
EPS = f32(1e-5)

REC_SZ = 4096
OX_OFF = 2048
ML_OFF = 2304
H_OFF = 0x100000
ACT_OFF = 0x101000
WS_SZ = 0x104000
OOB = 0x7FFF0000

L_XN = 0
L_QP = 2048
L_ST = 4096
L_GS = 4160
L_CT = 4168
L_OP = 4352
L_YP = 8448
L_DP = 16640
L_H = 24832
L_HS = 28928
L_FW = 29184
LDS_BYTES = 29184 + 45056

e = Emitter()
lab_id = [0]


def newlab(p):
    lab_id[0] += 1
    return f"L_{p}_{lab_id[0]}"


def allreduce(v, op, t):
    for r in (8, 4, 2, 1):
        e(f"{op} v{v}, v{v}, v{v} row_ror:{r}")
    xrow_reduce(v, op, t)


def xrow_reduce(v, op, t):
    e(f"v_mov_b32 v{t}, v{v}")
    e(f"v_permlane16_swap_b32 v{v}, v{t}")
    e(f"{op} v{v}, v{v}, v{t}")
    e(f"v_mov_b32 v{t}, v{v}")
    e(f"v_permlane32_swap_b32 v{v}, v{t}")
    e(f"{op} v{v}, v{v}, v{t}")


def rnd1(v, t):
    e(f"v_cvt_pk_bf16_f32 v{t}, v{v}, v{v}")
    e(f"v_lshlrev_b32 v{v}, 16, v{t}")


def rnd2(a, b, t):
    e(f"v_cvt_pk_bf16_f32 v{t}, v{a}, v{b}")
    e(f"v_lshlrev_b32 v{a}, 16, v{t}")
    e(f"v_and_b32 v{b}, 0xffff0000, v{t}")


def halving8(a):
    for i in range(4):
        e(f"v_permlane32_swap_b32 v{a+i}, v{a+4+i}")
    for i in range(4):
        e(f"v_add_f32 v{a+i}, v{a+i}, v{a+4+i}")
    e(f"v_permlane16_swap_b32 v{a}, v{a+2}")
    e(f"v_permlane16_swap_b32 v{a+1}, v{a+3}")
    e(f"v_add_f32 v{a}, v{a}, v{a+2}")
    e(f"v_add_f32 v{a+1}, v{a+1}, v{a+3}")


def canon(v, vnan):
    e(f"v_cmp_eq_u32 vcc, -1, v{v}")
    e(f"v_cndmask_b32 v{v}, v{v}, v{vnan}, vcc")


def maxu_tree(regs, t):
    regs = list(regs)
    if len(regs) == 1:
        e(f"v_mov_b32 v{t}, v{regs[0]}")
        return
    if len(regs) == 2:
        e(f"v_max_u32 v{t}, v{regs[0]}, v{regs[1]}")
        return
    e(f"v_max3_u32 v{t}, v{regs[0]}, v{regs[1]}, v{regs[2]}")
    k = 3
    while k < len(regs):
        if k + 1 < len(regs):
            e(f"v_max3_u32 v{t}, v{t}, v{regs[k]}, v{regs[k+1]}")
            k += 2
        else:
            e(f"v_max_u32 v{t}, v{t}, v{regs[k]}")
            k += 1


def poll(load_fn, regs, t, lanes_mask=None):
    lp = newlab("poll")
    dn = newlab("polldone")
    e("s_mov_b32 s14, 0")
    e.label(lp)
    load_fn()
    e("s_waitcnt vmcnt(0)")
    maxu_tree(regs, t)
    e(f"v_cmp_eq_u32 vcc, -1, v{t}")
    if lanes_mask is not None:
        e(f"s_and_b32 vcc_lo, vcc_lo, {lanes_mask[0]}")
        e(f"s_and_b32 vcc_hi, vcc_hi, {lanes_mask[1]}")
    e("s_nop 4")
    e(f"s_cbranch_vccz {dn}")
    e("s_add_u32 s14, s14, 1")
    e("s_cmp_gt_u32 s14, 400000")
    e(f"s_cbranch_scc1 {dn}")
    e(f"s_sleep {OPT['sleep']}")
    e(f"s_branch {lp}")
    e.label(dn)


def stamp(idx, cond_wave=0):
    if not OPT["stamp"]:
        return
    l = newlab("st")
    e(f"s_cmp_eq_u32 s3, {cond_wave}")
    e(f"s_cbranch_scc0 {l}")
    e("s_memrealtime s[98:99]")
    e("s_lshl_b32 s100, s2, 8")
    e(f"s_add_u32 s100, s100, {0x200000 + idx*8}")
    e("s_waitcnt lgkmcnt(0)")
    e("v_mov_b32 v164, s98")
    e("v_mov_b32 v165, s99")
    e("v_mov_b32 v166, s100")
    e("s_mov_b64 exec, 1")
    e("global_store_dwordx2 v166, v[164:165], s[38:39]")
    e("s_mov_b64 exec, -1")
    e.label(l)


hdr = open(f"cdna_kernels/{NAME}.s.ref").read().split("\n")
head_lines = []
for ln in hdr:
    if ln.startswith("; @launch"):
        head_lines.append(f"; @launch grid=(256,1,1) block=(768,1,1) lds={LDS_BYTES}")
    elif ln.startswith(";"):
        head_lines.append(ln)
    else:
        break
e.raw("\n".join(head_lines))
e.raw('.amdgcn_target "amdgcn-amd-amdhsa--gfx950"')
e.raw(".text")
e.raw(f".globl {NAME}_kernel")
e.raw(".p2align 8")
e.raw(f".type {NAME}_kernel,@function")
e.raw(f"{NAME}_kernel:")

e("s_cmp_ge_u32 s2, 256")
e("s_cbranch_scc1 L_END")
if OPT["stamp"]:
    e("s_memrealtime s[90:91]")
if OPT["cpf"]:
    e("s_getpc_b64 s[86:87]")
    e("v_lshlrev_b32 v4, 7, v0")
    e("v_cmp_gt_u32 vcc, 192, v0")
    e("s_and_saveexec_b64 s[84:85], vcc")
    e("global_load_dword v167, v4, s[86:87]")
    e("s_mov_b64 exec, s[84:85]")
e("s_load_dwordx16 s[16:31], s[0:1], 0")
e("s_load_dwordx8 s[32:39], s[0:1], 64")
e("v_lshrrev_b32 v4, 6, v0")
e("v_and_b32 v1, 63, v0")
e("v_readfirstlane_b32 s3, v4")
e("v_lshrrev_b32 v2, 4, v1")
e("v_and_b32 v3, 15, v1")
e("s_and_b32 s4, s2, 7")
e("s_lshr_b32 s5, s2, 3")
e("s_and_b32 s6, s5, 3")
e("s_lshl_b32 s6, s6, 3")
e("s_add_u32 s6, s6, s4")
e("s_lshr_b32 s7, s2, 5")
e("s_lshr_b32 s8, s7, 1")
e("s_and_b32 s9, s7, 1")
e(f"s_mov_b32 s96, {LOG2E}")
e(f"s_mov_b32 s97, {CSC}")
e("s_cmp_lt_u32 s3, 4")
e("s_cbranch_scc1 L_SERVICE")

S0 = 16
Q0 = 24
A0 = 28
T0 = 36
MR = 44
LR = 45
AL = 46
KS = 48
VS = 80

e("s_sub_u32 s3, s3, 4")
e("s_lshl_b32 s10, s8, 5")
e("s_add_u32 s10, s10, s6")
e("s_lshl_b32 s10, s10, 21")
e("s_lshl_b32 s11, s9, 18")
e("s_add_u32 s10, s10, s11")
e("s_add_u32 s10, s10, 0x180000")
e("v_lshlrev_b32 v4, 4, v1")
e("s_waitcnt lgkmcnt(0)")
if OPT["stamp"]:
    e("s_memrealtime s[88:89]")
e("s_add_u32 s40, s18, s10")
e("s_addc_u32 s41, s19, 0")
e("s_and_b32 s41, s41, 0xffff")
e("s_mov_b32 s42, 0x40000")
e("s_mov_b32 s43, 0x20000")
e("s_add_u32 s44, s20, s10")
e("s_addc_u32 s45, s21, 0")
e("s_and_b32 s45, s45, 0xffff")
e("s_mov_b32 s46, 0x40000")
e("s_mov_b32 s47, 0x20000")
e("s_lshl_b32 s12, s3, 13")
e("s_add_u32 s13, s12, 4096")


def kv_load(isv, k):
    srd = "s[44:47]" if isv else "s[40:43]"
    r = (VS if isv else KS) + 4 * k
    so = "s13" if k >= 4 else "s12"
    e(f"buffer_load_dwordx4 v[{r}:{r+3}], v4, {srd}, {so} offen offset:{(k&3)*1024}{OPT['kv_nt']}")


if OPT["wqfirst"]:
    e("s_barrier")
for k in range(8):
    kv_load(0, k)
if OPT["vearly"]:
    for k in range(8):
        kv_load(1, k)
stamp(0)
if OPT["stamp"]:
    l = newlab("st")
    e("s_cmp_eq_u32 s3, 0")
    e(f"s_cbranch_scc0 {l}")
    e("s_lshl_b32 s100, s2, 8")
    e(f"s_add_u32 s100, s100, {0x200000 + 13*8}")
    e("v_mov_b32 v164, s90")
    e("v_mov_b32 v165, s91")
    e("v_mov_b32 v166, s88")
    e("v_mov_b32 v167, s89")
    e("v_mov_b32 v163, s100")
    e("s_mov_b64 exec, 1")
    e("global_store_dwordx4 v163, v[164:167], s[38:39]")
    e("s_mov_b64 exec, -1")
    e("s_nop 4")
    e.label(l)
e(f"v_lshlrev_b32 v5, 5, v3")
e(f"v_mov_b32 v{MR}, 0xff7fffff")
e(f"v_mov_b32 v{LR}, 0")
for k in range(8):
    e(f"v_mov_b32 v{A0+k}, 0")
e("s_barrier")
if not OPT["vearly"]:
    for k in range(8):
        kv_load(1, k)
stamp(1)
for w in range(4):
    e(f"ds_read_b128 v[{KS+64+8*w}:{KS+64+8*w+3}], v5 offset:{L_QP + w*512}")
    e(f"ds_read_b128 v[{KS+64+8*w+4}:{KS+64+8*w+7}], v5 offset:{L_QP + w*512 + 16}")
e("s_waitcnt lgkmcnt(0)")
QT = KS + 64
for k in range(8):
    e(f"v_add_f32 v{QT+k}, v{QT+k}, v{QT+8+k}")
    e(f"v_add_f32 v{QT+16+k}, v{QT+16+k}, v{QT+24+k}")
for k in range(8):
    e(f"v_add_f32 v{QT+k}, v{QT+k}, v{QT+16+k}")
for t in range(4):
    e(f"v_cvt_pk_bf16_f32 v{Q0+t}, v{QT+2*t}, v{QT+2*t+1}")
e("v_mov_b32 v6, 0")
e("v_mov_b32 v7, 1")
e.label("L_SLOOP")
e("s_mov_b64 exec, 1")
e(f"ds_add_rtn_u32 v8, v6, v7 offset:{L_CT}")
e("s_mov_b64 exec, -1")
for g0 in (0, 4):
    e("s_waitcnt vmcnt(12)")
    for t in range(4):
        for k in range(4):
            r = KS + 4 * (g0 + k)
            d = S0 + g0 + k
            if t == 0:
                e(f"v_dot2_f32_bf16 v{d}, v{r}, v{Q0}, 0")
            else:
                e(f"v_dot2c_f32_bf16 v{d}, v{r+t}, v{Q0+t}")
    if g0 == 0:
        e("s_waitcnt lgkmcnt(0)")
        e("v_readfirstlane_b32 s14, v8")
        e("s_nop 3")
        e("s_lshl_b32 s12, s14, 13")
        e("s_add_u32 s13, s12, 4096")
    for k in range(4):
        kv_load(0, g0 + k)
for r in (8, 4, 2, 1):
    for k in range(8):
        d = S0 + k
        e(f"v_add_f32 v{d}, v{d}, v{d} row_ror:{r}")
for k in range(0, 8, 2):
    rnd2(S0 + k, S0 + k + 1, T0 + k // 2)
for k in range(8):
    e(f"v_mul_f32 v{S0+k}, s97, v{S0+k}")
for k in range(0, 8, 2):
    rnd2(S0 + k, S0 + k + 1, T0 + k // 2)
e(f"v_max3_f32 v{T0}, v{S0}, v{S0+1}, v{S0+2}")
e(f"v_max3_f32 v{T0+1}, v{S0+3}, v{S0+4}, v{S0+5}")
e(f"v_max3_f32 v{T0+2}, v{S0+6}, v{S0+7}, v{MR}")
e(f"v_max3_f32 v{T0}, v{T0}, v{T0+1}, v{T0+2}")
e(f"v_sub_f32 v{AL}, v{MR}, v{T0}")
e(f"v_mov_b32 v{MR}, v{T0}")
for k in range(8):
    e(f"v_sub_f32 v{S0+k}, v{S0+k}, v{MR}")
e(f"v_mul_f32 v{AL}, s96, v{AL}")
for k in range(8):
    e(f"v_mul_f32 v{S0+k}, s96, v{S0+k}")
e(f"v_exp_f32 v{AL}, v{AL}")
for k in range(8):
    e(f"v_exp_f32 v{S0+k}, v{S0+k}")
e(f"v_mul_f32 v{LR}, v{LR}, v{AL}")
for k in range(8):
    e(f"v_mul_f32 v{A0+k}, v{A0+k}, v{AL}")
e(f"v_add_f32 v{T0}, v{S0}, v{S0+1}")
e(f"v_add_f32 v{T0+1}, v{S0+2}, v{S0+3}")
e(f"v_add_f32 v{T0+2}, v{S0+4}, v{S0+5}")
e(f"v_add_f32 v{T0+3}, v{S0+6}, v{S0+7}")
e(f"v_add_f32 v{T0}, v{T0}, v{T0+1}")
e(f"v_add_f32 v{T0+2}, v{T0+2}, v{T0+3}")
e(f"v_add_f32 v{LR}, v{LR}, v{T0}")
e(f"v_add_f32 v{LR}, v{LR}, v{T0+2}")
for k in range(8):
    e(f"v_cvt_pk_bf16_f32 v{S0+k}, v{S0+k}, 0")
for k in range(8):
    e(f"v_lshlrev_b32 v{T0+k}, 16, v{S0+k}")
for k0 in range(0, 8, 2):
    e("s_waitcnt vmcnt(14)")
    for k in (k0, k0 + 1):
        r = VS + 4 * k
        for t in range(4):
            e(f"v_dot2c_f32_bf16 v{A0+2*t}, v{r+t}, v{S0+k}")
            e(f"v_dot2c_f32_bf16 v{A0+2*t+1}, v{r+t}, v{T0+k}")
    for k in (k0, k0 + 1):
        kv_load(1, k)
e("s_cmp_lt_u32 s14, 32")
e.fence()
e("s_cbranch_scc1 L_SLOOP")
e(f"v_mov_b32 v{T0}, v{MR}")
xrow_reduce(T0, "v_max_f32", T0 + 2)
e(f"v_sub_f32 v{AL}, v{MR}, v{T0}")
e(f"v_mul_f32 v{AL}, s96, v{AL}")
e(f"v_exp_f32 v{AL}, v{AL}")
e(f"v_mul_f32 v{T0+1}, v{LR}, v{AL}")
for k in range(8):
    e(f"v_mul_f32 v{A0+k}, v{A0+k}, v{AL}")
xrow_reduce(T0 + 1, "v_add_f32", T0 + 2)
halving8(A0)
e("s_lshl_b32 s11, s3, 3")
e("v_mov_b32 v6, s11")
e(f"ds_write_b64 v6, v[{T0}:{T0+1}] offset:{L_ST}")
e("s_lshl_b32 s11, s3, 9")
e("v_lshl_add_u32 v6, v2, 3, v5")
e("v_add_u32 v6, s11, v6")
e(f"ds_write_b64 v6, v[{A0}:{A0+1}] offset:{L_OP}")
e("s_waitcnt lgkmcnt(0)")
stamp(4)
e("s_barrier")
e("s_endpgm")

e.fence()
e.raw("L_SERVICE:")
vq = VmQueue(e)
W0 = 32
F0 = 96
e("s_lshl_b32 s92, s8, 6")
e("s_lshl_b32 s10, s6, 1")
e("s_add_u32 s92, s92, s10")
e("s_add_u32 s93, s92, s9")
e("s_xor_b32 s10, s9, 1")
e("s_add_u32 s92, s92, s10")
e("s_lshl_b32 s93, s93, 12")
e("s_lshl_b32 s92, s92, 12")
e("s_mov_b32 s94, 0")
e("s_mul_i32 s95, s4, 11")
e("s_add_u32 s95, s95, s5")
e("s_cmp_lt_u32 s5, 11")
e("s_cselect_b32 s10, 1, 0")
e("s_cmp_lt_u32 s95, 86")
e("s_cselect_b32 s11, 1, 0")
e("s_and_b32 s94, s10, s11")
e("s_sub_u32 s10, s5, 11")
e("s_cmp_lt_u32 s10, 4")
lr = newlab("role")
e(f"s_cbranch_scc0 {lr}")
e("s_mov_b32 s94, 2")
e("s_lshl_b32 s95, s4, 2")
e("s_add_u32 s95, s95, s10")
e.label(lr)
lr2 = newlab("role")
e("s_sub_u32 s10, s5, 16")
e("s_cmp_lt_u32 s10, 8")
e(f"s_cbranch_scc0 {lr2}")
e("s_mov_b32 s94, 3")
e("s_lshl_b32 s95, s10, 3")
e("s_add_u32 s95, s95, s4")
e.label(lr2)
e("v_lshlrev_b32 v4, 4, v0")
e("v_add_u32 v4, s93, v4")
e(f"v_mov_b32 v5, {OOB}")
e("v_cmp_gt_u32 vcc, 160, v0")
e("v_cndmask_b32 v6, v5, v4, vcc")
e("s_lshl_b32 s12, s95, 6")
e("s_and_b32 s12, s12, 0xfff")
e(f"s_add_u32 s13, s12, {H_OFF}")
e("s_cmp_eq_u32 s94, 3")
e(f"s_cselect_b32 s10, s13, {OOB}")
e("v_subrev_u32 v7, 0xa0, v0")
e("v_lshl_add_u32 v4, v7, 4, s10")
e("v_cmp_gt_u32 vcc, 4, v7")
e("v_cndmask_b32 v6, v6, v4, vcc")
e("s_lshl_b32 s10, s95, 5")
e(f"s_add_u32 s10, s10, {ACT_OFF}")
e("s_cmp_eq_u32 s94, 1")
e(f"s_cselect_b32 s10, s10, {OOB}")
e("v_subrev_u32 v7, 0xc0, v0")
e("v_lshrrev_b32 v4, 1, v7")
e("v_mul_u32_u24 v4, 2752, v4")
e("v_and_b32 v8, 1, v7")
e("v_lshl_add_u32 v4, v8, 4, v4")
e("v_add_u32 v4, s10, v4")
e("v_cmp_gt_u32 vcc, 8, v7")
e("v_cndmask_b32 v6, v6, v4, vcc")
for k in range(8, 12):
    e(f"v_mov_b32 v{k}, -1")
e("s_lshl_b32 s10, s8, 10")
e("v_lshl_add_u32 v5, v1, 4, s10")
e("s_waitcnt lgkmcnt(0)")
e("s_mov_b32 s48, s38")
e("s_and_b32 s49, s39, 0xffff")
e(f"s_mov_b32 s50, {WS_SZ}")
e("s_mov_b32 s51, 0x20000")
e("s_mov_b32 s40, s22")
e("s_and_b32 s41, s23, 0xffff")
e("s_mov_b32 s42, 0x400000")
e("s_mov_b32 s43, 0x20000")
e("s_mov_b32 s44, s24")
e("s_and_b32 s45, s25, 0xffff")
e("s_mov_b32 s46, 0x400000")
e("s_mov_b32 s47, 0x20000")
e("buffer_store_dwordx4 v[8:11], v6, s[48:51], 0 offen sc1")
vq.issue("clr")
e("global_load_dwordx4 v[12:15], v5, s[16:17]")
vq.issue("x")
e("s_lshl_b32 s10, s3, 20")
e("s_lshl_b32 s11, s6, 8")
e("s_add_u32 s10, s10, s11")
e("v_lshlrev_b32 v4, 18, v2")
e("v_lshl_add_u32 v4, v3, 4, v4")
e("v_add_u32 v4, s10, v4")
for i in range(32):
    if not OPT["nowq"]:
        e(f"s_mov_b32 s10, {i*8192}")
        e(f"buffer_load_dwordx4 v[{W0+4*i}:{W0+4*i+3}], v4, s[40:43], s10 offen{OPT['w_nt']}")
    vq.issue(("wq", i))
if OPT["wqfirst"]:
    e("s_barrier")
e("v_lshl_add_u32 v5, v2, 4, s12")
e("global_load_dwordx4 v[160:163], v5, s[16:17]")
vq.issue("xr")
vq.wait("x")
stamp(3)
X = 16
for t in range(4):
    e(f"v_lshlrev_b32 v{X+2*t}, 16, v{12+t}")
    e(f"v_and_b32 v{X+2*t+1}, 0xffff0000, v{12+t}")


def ln_core(X, n, red, inv_n, vs, vt, vmb, vden, vr):
    e(f"v_add_f32 v{vs}, v{X}, v{X+1}")
    for k in range(2, n):
        e(f"v_add_f32 v{vs}, v{vs}, v{X+k}")
    red(vs)
    e(f"v_mul_f32 v{vs}, {inv_n}, v{vs}")
    e(f"v_mov_b32 v{vmb}, v{vs}")
    rnd1(vmb, vt)
    e(f"v_sub_f32 v{vt}, v{X}, v{vs}")
    e(f"v_mul_f32 v{vden}, v{vt}, v{vt}")
    for k in range(1, n):
        e(f"v_sub_f32 v{vt}, v{X+k}, v{vs}")
        e(f"v_fmac_f32 v{vden}, v{vt}, v{vt}")
    red(vden)
    e(f"v_mul_f32 v{vden}, {inv_n}, v{vden}")
    rnd1(vden, vt)
    e(f"v_add_f32 v{vden}, {EPS}, v{vden}")
    rnd1(vden, vt)
    e(f"v_sqrt_f32 v{vden}, v{vden}")
    rnd1(vden, vt)
    e(f"v_rcp_f32 v{vr}, v{vden}")


def ln_apply(v, vmb, vden, vr, t1, t2):
    e(f"v_sub_f32 v{v}, v{v}, v{vmb}")
    rnd1(v, t1)
    e(f"v_mul_f32 v{t1}, v{v}, v{vr}")
    e(f"v_fma_f32 v{t2}, -v{t1}, v{vden}, v{v}")
    e(f"v_fma_f32 v{v}, v{t2}, v{vr}, v{t1}")


INV512 = f32(1.0 / 512)
ln_core(X, 8, lambda v: allreduce(v, "v_add_f32", 7), INV512, 24, 25, 26, 27, 28)
for k in range(8):
    ln_apply(X + k, 26, 27, 28, 24, 25)
for k in range(0, 8, 2):
    rnd2(X + k, X + k + 1, 24)
e("v_lshlrev_b32 v5, 5, v1")
e(f"ds_write_b128 v5, v[{X}:{X+3}] offset:{L_XN}")
e(f"ds_write_b128 v5, v[{X+4}:{X+7}] offset:{L_XN+16}")
e("s_lshl_b32 s10, s3, 9")
e("v_lshl_add_u32 v5, v2, 7, s10")
e("s_waitcnt lgkmcnt(0)")
QA = 8
for k in range(8):
    e(f"v_mov_b32 v{QA+k}, 0")
for i in range(32):
    if i % 4 == 0:
        e(f"ds_read_b128 v[{X}:{X+3}], v5 offset:{L_XN + i*4}")
        vq.wait(("wq", i + 3))
        e("s_waitcnt lgkmcnt(0)")
        if i == 0:
            stamp(6)
        for k in range(4):
            e(f"v_lshrrev_b32 v{X+4+k}, 16, v{X+k}")
    s = W0 + 4 * i
    for t in range(4):
        e(f"v_dot2c_f32_bf16 v{QA+2*t}, v{s+t}, v{X+4+(i%4)}")
        e(f"v_dot2c_f32_bf16 v{QA+2*t+1}, v{s+t}, v{X+(i%4)}")
halving8(QA)
e("v_lshlrev_b32 v5, 5, v3")
e("v_lshl_add_u32 v5, v2, 3, v5")
e("s_lshl_b32 s10, s3, 9")
e("v_add_u32 v6, s10, v5")
e(f"ds_write_b64 v6, v[{QA}:{QA+1}] offset:{L_QP}")
e("v_mov_b32 v6, 0")
e("v_mov_b32 v7, 8")
e(f"ds_write_b32 v6, v7 offset:{L_CT}")
e("s_waitcnt lgkmcnt(0)")
e("s_barrier")
l1 = newlab("noadd")
e("s_cmp_eq_u32 s3, 0")
e(f"s_cbranch_scc0 {l1}")
e("v_mov_b32 v6, 0")
e("v_mov_b32 v7, 1")
e("s_mov_b64 exec, 1")
e("global_atomic_add v6, v7, s[36:37]")
e("s_mov_b64 exec, -1")
e.label(l1)
lgu = newlab("ldgu")
ldn = newlab("lddn")
lfe = newlab("ldend")
e("v_lshrrev_b32 v5, 1, v1")
e("v_and_b32 v6, 1, v1")
e("s_cmp_eq_u32 s94, 1")
e(f"s_cbranch_scc1 {lgu}")
e("s_cmp_eq_u32 s94, 2")
e(f"s_cbranch_scc1 {ldn}")
e(f"s_branch {lfe}")
e.label(lgu)
e("s_mov_b32 s52, s28")
e("s_and_b32 s53, s29, 0xffff")
e(f"s_mov_b32 s54, {512*2752}")
e("s_mov_b32 s55, 0x20000")
e("s_mov_b32 s56, s30")
e("s_and_b32 s57, s31, 0xffff")
e(f"s_mov_b32 s58, {512*2752}")
e("s_mov_b32 s59, 0x20000")
e("s_lshl_b32 s10, s3, 7")
e("v_add_u32 v4, s10, v5")
e("v_lshlrev_b32 v7, 5, v4")
e("v_lshl_add_u32 v7, v6, 4, v7")
e("v_mul_u32_u24 v4, 2752, v4")
e("v_lshl_add_u32 v4, v6, 4, v4")
e("s_lshl_b32 s10, s95, 5")
e("v_add_u32 v4, s10, v4")
for i in range(4):
    e(f"s_mov_b32 s10, {i*32*2752}")
    e(f"buffer_load_dwordx4 v[{W0+4*i}:{W0+4*i+3}], v4, s[52:55], s10 offen{OPT['f_nt']}")
    e(f"buffer_load_dwordx4 v[{W0+16+4*i}:{W0+16+4*i+3}], v4, s[56:59], s10 offen{OPT['f_nt']}")
e("s_waitcnt vmcnt(0)")
for i in range(4):
    e(f"ds_write_b128 v7, v[{W0+4*i}:{W0+4*i+3}] offset:{L_FW + 1024*i}")
    e(f"ds_write_b128 v7, v[{W0+16+4*i}:{W0+16+4*i+3}] offset:{L_FW + 16384 + 1024*i}")
e(f"s_branch {lfe}")
e.label(ldn)
e("s_mov_b32 s52, s32")
e("s_and_b32 s53, s33, 0xffff")
e(f"s_mov_b32 s54, {1376*1024}")
e("s_mov_b32 s55, 0x20000")
e("s_mul_i32 s10, s3, 352")
e("v_add_u32 v4, s10, v5")
e("v_lshlrev_b32 v7, 5, v4")
e("v_lshl_add_u32 v7, v6, 4, v7")
e("v_lshlrev_b32 v4, 10, v4")
e("v_lshl_add_u32 v4, v6, 4, v4")
e("s_lshl_b32 s10, s95, 5")
e("v_add_u32 v4, s10, v4")
for i in range(11):
    e(f"s_mov_b32 s10, {i*32*1024}")
    e(f"buffer_load_dwordx4 v[{W0+4*i}:{W0+4*i+3}], v4, s[52:55], s10 offen{OPT['f_nt']}")
e("s_waitcnt vmcnt(0)")
for i in range(11):
    e(f"ds_write_b128 v7, v[{W0+4*i}:{W0+4*i+3}] offset:{L_FW + 1024*i}")
e.label(lfe)
e("s_waitcnt lgkmcnt(0)")
e("s_lshl_b32 s10, s6, 7")
e("s_lshl_b32 s11, s3, 5")
e("s_add_u32 s10, s10, s11")
e("s_lshl_b32 s10, s10, 10")
e("v_lshl_add_u32 v4, v1, 4, s10")
for r in range(32 if not OPT["nowo"] else 0):
    if r % 4 == 0:
        e(f"s_mov_b32 s10, {(r//4)*4096}")
    e(f"buffer_load_dwordx4 v[{W0+4*r}:{W0+4*r+3}], v4, s[44:47], s10 offen offset:{(r%4)*1024}{OPT['w_nt']}")
e("v_mov_b32 v30, 0x7fc00000")
e("v_mov_b32 v29, 0x7fc07fc0")
e("v_mov_b32 v6, 0")
lp = newlab("cnt")
dn = newlab("cntdone")
e("s_cmp_eq_u32 s3, 0")
e(f"s_cbranch_scc0 {dn}")
e("s_cmp_eq_u32 s94, 0")
e(f"s_cbranch_scc1 {dn}")
e("s_mov_b32 s14, 0")
e.label(lp)
e("s_sleep 100")
e("global_load_dword v7, v6, s[36:37] sc1")
e("s_waitcnt vmcnt(0)")
e("v_readfirstlane_b32 s10, v7")
e("s_nop 3")
e("s_cmp_ge_u32 s10, 256")
e(f"s_cbranch_scc1 {dn}")
e("s_add_u32 s14, s14, 1")
e("s_cmp_gt_u32 s14, 100000")
e(f"s_cbranch_scc1 {dn}")
e(f"s_branch {lp}")
e.label(dn)
e("v_and_b32 v4, 31, v1")
e("s_lshl_b32 s10, s3, 7")
e("v_lshl_add_u32 v5, v4, 2, s10")
e("s_barrier")
stamp(5)
for k in range(4):
    e(f"ds_read_b128 v[{8+4*k}:{11+4*k}], v6 offset:{L_ST+16*k}")
OWL = [24, 25, 26, 27, 28, 31, 4, 7]
for w in range(8):
    e(f"ds_read_b32 v{OWL[w]}, v5 offset:{L_OP + w*512}")
e("s_waitcnt lgkmcnt(0)")
e("v_max3_f32 v164, v8, v10, v12")
e("v_max3_f32 v164, v164, v14, v16")
e("v_max3_f32 v164, v164, v18, v20")
e("v_max_f32 v164, v164, v22")
for k in range(8):
    e(f"v_sub_f32 v{8+2*k}, v{8+2*k}, v164")
for k in range(8):
    e(f"v_mul_f32 v{8+2*k}, s96, v{8+2*k}")
for k in range(8):
    e(f"v_exp_f32 v{8+2*k}, v{8+2*k}")
e("v_mul_f32 v165, v8, v9")
e(f"v_mul_f32 v166, v8, v{OWL[0]}")
for k in range(1, 8):
    e(f"v_fmac_f32 v165, v{8+2*k}, v{9+2*k}")
    e(f"v_fmac_f32 v166, v{8+2*k}, v{OWL[k]}")
e("v_rcp_f32 v27, v165")
e("v_mul_f32 v26, v166, v27")
e("v_cvt_pk_bf16_f32 v26, v26, 0")
e("v_mov_b32 v24, v164")
e("v_mov_b32 v25, v165")
YA = 8
for k in range(8):
    e(f"v_mov_b32 v{YA+k}, 0")
for half_ in range(2):
    for r in range(16):
        e(f"v_readlane_b32 s{60+r}, v26, {half_*16+r}")
    for r in range(16):
        e(f"s_lshl_b32 s{76+r}, s{60+r}, 16")
    for r in range(16):
        s_ = W0 + 4 * (half_ * 16 + r)
        for t in range(4):
            e(f"v_dot2c_f32_bf16 v{YA+2*t}, s{60+r}, v{s_+t}")
            e(f"v_dot2c_f32_bf16 v{YA+2*t+1}, s{76+r}, v{s_+t}")
e("s_lshl_b32 s10, s3, 11")
e("v_lshl_add_u32 v5, v1, 5, s10")
e(f"ds_write_b128 v5, v[{YA}:{YA+3}] offset:{L_YP}")
e(f"ds_write_b128 v5, v[{YA+4}:{YA+7}] offset:{L_YP+16}")
e("s_waitcnt lgkmcnt(0)")
e("s_barrier")
stamp(7)
lred = newlab("red")
lrole = newlab("role2")
lml = newlab("ml")
e("s_cmp_eq_u32 s3, 0")
e(f"s_cbranch_scc1 {lred}")
e("s_cmp_lt_u32 s3, 2")
e(f"s_cbranch_scc1 {lml}")
e("s_sub_u32 s10, s3, 2")
e("s_lshl_b32 s10, s10, 10")
e("v_lshl_add_u32 v5, v1, 4, s10")
for w in range(4):
    e(f"ds_read_b128 v[{8+4*w}:{11+4*w}], v5 offset:{L_YP + w*2048}")
e("s_waitcnt lgkmcnt(0)")
for k in range(4):
    e(f"v_add_f32 v{8+k}, v{8+k}, v{12+k}")
    e(f"v_add_f32 v{16+k}, v{16+k}, v{20+k}")
for k in range(4):
    e(f"v_add_f32 v{8+k}, v{8+k}, v{16+k}")
for k in range(4):
    canon(8 + k, 30)
e("v_add_u32 v5, s93, v5")
e("buffer_store_dwordx4 v[8:11], v5, s[48:51], 0 offen sc1")
e(f"s_branch {lrole}")
e.label(lml)
canon(24, 30)
canon(25, 30)
e(f"s_add_u32 s10, s93, {ML_OFF}")
e("v_mov_b32 v6, s10")
e("s_mov_b64 exec, 1")
e("buffer_store_dwordx2 v[24:25], v6, s[48:51], 0 offen sc1")
e("s_mov_b64 exec, -1")
e(f"s_branch {lrole}")
e.label(lred)
e("s_cmp_eq_u32 s94, 3")
e(f"s_cbranch_scc0 {lrole}")
e("s_lshr_b32 s10, s95, 4")
e("s_lshl_b32 s10, s10, 18")
e("v_lshl_add_u32 v6, v1, 12, s10")
e("s_and_b32 s11, s95, 15")
e("s_lshl_b32 s11, s11, 7")
e("v_add_u32 v5, s11, v6")
RY = 32


def red_loads():
    for k in range(8):
        e(f"buffer_load_dwordx4 v[{RY+4*k}:{RY+4*k+3}], v5, s[48:51], 0 offen offset:{16*k} sc1")
    e(f"buffer_load_dwordx2 v[16:17], v6, s[48:51], 0 offen offset:{ML_OFF} sc1")


poll(red_loads, list(range(RY, RY + 32)) + [16, 17], 18)
stamp(8)
e("v_mov_b32_dpp v18, v16 quad_perm:[1,0,3,2] row_mask:0xf bank_mask:0xf")
e("v_mov_b32_dpp v19, v17 quad_perm:[1,0,3,2] row_mask:0xf bank_mask:0xf")
e("v_max_f32 v20, v16, v18")
e("v_sub_f32 v16, v16, v20")
e("v_sub_f32 v18, v18, v20")
e("v_mul_f32 v16, s96, v16")
e("v_mul_f32 v18, s96, v18")
e("v_exp_f32 v16, v16")
e("v_exp_f32 v18, v18")
e("v_mul_f32 v16, v16, v17")
e("v_mul_f32 v18, v18, v19")
e("v_add_f32 v18, v16, v18")
e("v_rcp_f32 v18, v18")
e("v_mul_f32 v16, v16, v18")
for k in range(32):
    e(f"v_mul_f32 v{RY+k}, v{RY+k}, v16")
for i in range(16):
    e(f"v_permlane32_swap_b32 v{RY+i}, v{RY+16+i}")
for i in range(16):
    e(f"v_add_f32 v{RY+i}, v{RY+i}, v{RY+16+i}")
for i in range(8):
    e(f"v_permlane16_swap_b32 v{RY+i}, v{RY+8+i}")
for i in range(8):
    e(f"v_add_f32 v{RY+i}, v{RY+i}, v{RY+8+i}")
for r in (8, 4, 2, 1):
    for i in range(8):
        e(f"v_add_f32 v{RY+i}, v{RY+i}, v{RY+i} row_ror:{r}")
for i in range(0, 8, 2):
    rnd2(RY + i, RY + i + 1, 16)
for t in range(4):
    e(f"v_lshlrev_b32 v{RY+8+2*t}, 16, v{160+t}")
    e(f"v_and_b32 v{RY+9+2*t}, 0xffff0000, v{160+t}")
for i in range(8):
    e(f"v_add_f32 v{RY+i}, v{RY+i}, v{RY+8+i}")
for t in range(4):
    e(f"v_cvt_pk_bf16_f32 v{8+t}, v{RY+2*t}, v{RY+2*t+1}")
for t in range(4):
    canon(8 + t, 29)
e("v_lshl_add_u32 v5, v2, 4, s13")
e("s_mov_b32 exec_lo, 0x00010001")
e("s_mov_b32 exec_hi, 0x00010001")
e("buffer_store_dwordx4 v[8:11], v5, s[48:51], 0 offen sc1")
e("s_mov_b64 exec, -1")
e.label(lrole)
lgu2 = newlab("gu")
ldn2 = newlab("dn")
e("v_lshrrev_b32 v7, 2, v3")
e("v_lshl_add_u32 v7, v2, 3, v7")
e("v_lshlrev_b32 v7, 5, v7")
e("v_and_b32 v6, 3, v3")
e("v_lshl_add_u32 v7, v6, 3, v7")
e("s_cmp_eq_u32 s94, 1")
e(f"s_cbranch_scc1 {lgu2}")
e("s_cmp_eq_u32 s94, 2")
e(f"s_cbranch_scc1 {ldn2}")
e("s_endpgm")

e.label(lgu2)
HS = 32
HF = 48
HX = 64
e("s_lshl_b32 s10, s3, 12")
e("v_add_u32 v7, s10, v7")
for k in range(8):
    base = L_FW + (k // 4) * 16384 + (k % 4) * 1024
    e(f"ds_read_b64_tr_b16 v[{F0+4*k}:{F0+4*k+1}], v7 offset:{base}")
    e(f"ds_read_b64_tr_b16 v[{F0+4*k+2}:{F0+4*k+3}], v7 offset:{base+128}")
e("v_and_b32 v4, 3, v1")
e("v_lshlrev_b32 v4, 10, v4")
lg1 = newlab("gskip")
e("s_cmp_eq_u32 s3, 0")
e(f"s_cbranch_scc0 {lg1}")
e("v_lshrrev_b32 v5, 2, v1")
e("v_lshl_add_u32 v5, v5, 6, v4")
e(f"v_add_u32 v6, {H_OFF}, v5")


def h_loads():
    for k in range(4):
        e(f"buffer_load_dwordx4 v[{HS+4*k}:{HS+4*k+3}], v6, s[48:51], 0 offen offset:{16*k} sc1")


poll(h_loads, range(HS, HS + 16), 7)
stamp(9)
for k in range(4):
    e(f"ds_write_b128 v5, v[{HS+4*k}:{HS+4*k+3}] offset:{L_H + 16*k}")
for k in range(16):
    e(f"v_lshlrev_b32 v{HX+2*k}, 16, v{HS+k}")
    e(f"v_and_b32 v{HX+2*k+1}, 0xffff0000, v{HS+k}")


def red_b4(v):
    e(f"v_add_f32 v{v}, v{v}, v{v} row_ror:8")
    e(f"v_add_f32 v{v}, v{v}, v{v} row_ror:4")
    xrow_reduce(v, "v_add_f32", 7)


ln_core(HX, 32, red_b4, INV512, 24, 25, 26, 27, 28)
e("v_and_b32 v5, 3, v1")
e("v_lshlrev_b32 v5, 4, v5")
e(f"ds_write_b96 v5, v[26:28] offset:{L_HS}")
e("s_waitcnt lgkmcnt(0)")
e.label(lg1)
e("s_barrier")
e("v_and_b32 v5, 3, v1")
e("v_lshlrev_b32 v5, 4, v5")
e(f"ds_read_b96 v[26:28], v5 offset:{L_HS}")
e("s_lshl_b32 s10, s3, 8")
e("v_lshl_add_u32 v6, v2, 4, v4")
e("v_add_u32 v6, s10, v6")
for k in range(4):
    e(f"ds_read_b128 v[{HF+4*k}:{HF+4*k+3}], v6 offset:{L_H + 64*k}")
e("s_waitcnt lgkmcnt(0)")
for k in range(16):
    e(f"v_lshlrev_b32 v{HX+2*k}, 16, v{HF+k}")
    e(f"v_and_b32 v{HX+2*k+1}, 0xffff0000, v{HF+k}")
for k in range(32):
    ln_apply(HX + k, 26, 27, 28, 24, 25)
for k in range(16):
    e(f"v_cvt_pk_bf16_f32 v{HF+k}, v{HX+2*k}, v{HX+2*k+1}")
e("s_waitcnt lgkmcnt(0)")
for kk in range(4):
    c = "0" if kk == 0 else "v[8:11]"
    e(f"v_mfma_f32_16x16x32_bf16 v[8:11], v[{HF+4*kk}:{HF+4*kk+3}], v[{F0+4*kk}:{F0+4*kk+3}], {c}")
for kk in range(4):
    c = "0" if kk == 0 else "v[12:15]"
    e(f"v_mfma_f32_16x16x32_bf16 v[12:15], v[{HF+4*kk}:{HF+4*kk+3}], v[{F0+16+4*kk}:{F0+16+4*kk+3}], {c}")
e("s_lshl_b32 s10, s3, 11")
e("v_lshl_add_u32 v5, v1, 4, s10")
e(f"ds_write_b128 v5, v[8:11] offset:{L_DP}")
e(f"ds_write_b128 v5, v[12:15] offset:{L_DP+1024}")
e("s_waitcnt lgkmcnt(0)")
e("s_barrier")
lend = newlab("guend")
e("s_cmp_eq_u32 s3, 0")
e(f"s_cbranch_scc0 {lend}")
e("v_and_b32 v4, 7, v1")
e("v_bfe_u32 v5, v1, 3, 2")
e("v_lshlrev_b32 v6, 5, v4")
e("v_lshl_add_u32 v6, v5, 2, v6")
for w in range(4):
    o = (L_DP + w * 2048) // 4
    e(f"v_add_u32 v7, {L_DP + w*2048}, v6")
    e(f"ds_read2_b32 v[{8+2*w}:{9+2*w}], v7 offset0:0 offset1:4")
    e(f"v_add_u32 v7, {L_DP + w*2048 + 1024}, v6")
    e(f"ds_read2_b32 v[{16+2*w}:{17+2*w}], v7 offset0:0 offset1:4")
e("s_waitcnt lgkmcnt(0)")
for base in (8, 16):
    for k in range(2):
        e(f"v_add_f32 v{base+k}, v{base+k}, v{base+2+k}")
        e(f"v_add_f32 v{base+4+k}, v{base+4+k}, v{base+6+k}")
    for k in range(2):
        e(f"v_add_f32 v{base+k}, v{base+k}, v{base+4+k}")
rnd2(8, 9, 24)
rnd2(16, 17, 24)
for k in range(2):
    e(f"v_mul_f32 v{10+k}, s96, v{8+k}")
    e(f"v_sub_f32 v{10+k}, 0, v{10+k}")
    e(f"v_exp_f32 v{10+k}, v{10+k}")
    e(f"v_add_f32 v{10+k}, 1.0, v{10+k}")
    e(f"v_rcp_f32 v{12+k}, v{10+k}")
    e(f"v_mul_f32 v{14+k}, v{8+k}, v{12+k}")
    e(f"v_fma_f32 v{18+k}, -v{14+k}, v{10+k}, v{8+k}")
    e(f"v_fma_f32 v{18+k}, v{18+k}, v{12+k}, v{14+k}")
    e(f"v_cmp_class_f32 vcc, v{18+k}, 3")
    e(f"v_cndmask_b32 v{8+k}, v{18+k}, v{14+k}, vcc")
rnd2(8, 9, 24)
e("v_mul_f32 v8, v8, v16")
e("v_mul_f32 v9, v9, v17")
e("v_cvt_pk_bf16_f32 v8, v8, v9")
canon(8, 29)
e("v_mul_u32_u24 v5, 2752, v5")
e("v_lshl_add_u32 v5, v4, 2, v5")
e("s_lshl_b32 s10, s95, 5")
e(f"s_add_u32 s10, s10, {ACT_OFF}")
e("v_add_u32 v5, s10, v5")
e("s_mov_b32 exec_hi, 0")
e("buffer_store_dword v8, v5, s[48:51], 0 offen sc1")
e("s_mov_b64 exec, -1")
stamp(10)
e.label(lend)
e("s_endpgm")

e.label(ldn2)
AF = 32
e("s_mul_i32 s10, s3, 11264")
e("v_add_u32 v7, s10, v7")
for k in range(11):
    base = L_FW + k * 1024
    e(f"ds_read_b64_tr_b16 v[{F0+4*k}:{F0+4*k+1}], v7 offset:{base}")
    e(f"ds_read_b64_tr_b16 v[{F0+4*k+2}:{F0+4*k+3}], v7 offset:{base+128}")
e("v_and_b32 v4, 3, v1")
e("v_mul_u32_u24 v4, 2752, v4")
e("v_lshl_add_u32 v4, v2, 4, v4")
e("s_mul_i32 s10, s3, 704")
e(f"s_add_u32 s10, s10, {ACT_OFF}")
e("v_add_u32 v5, s10, v4")
e("v_and_b32 v4, 7, v1")
e("v_bfe_u32 v6, v1, 3, 2")
e("v_lshlrev_b32 v7, 10, v6")
e("v_lshl_add_u32 v7, v4, 2, v7")
e("s_lshl_b32 s10, s95, 5")
e("v_add_u32 v7, s10, v7")
e(f"v_add_u32 v16, {H_OFF}, v7")
e("s_waitcnt lgkmcnt(0)")
lw3 = newlab("w3")
lj = newlab("dj")
e("s_cmp_eq_u32 s3, 3")
e(f"s_cbranch_scc1 {lw3}")


def act_loads(n):
    def f():
        for k in range(n):
            e(f"buffer_load_dwordx4 v[{AF+4*k}:{AF+4*k+3}], v5, s[48:51], 0 offen offset:{64*k} sc1")
        e(f"buffer_load_dword v17, v16, s[48:51], 0 offen sc1")
    return f


poll(act_loads(11), list(range(AF, AF + 44)) + [17], 18)
stamp(11)
e(f"v_mfma_f32_16x16x32_bf16 v[8:11], v[{AF+40}:{AF+43}], v[{F0+40}:{F0+43}], 0")
e(f"s_branch {lj}")
e.label(lw3)
poll(act_loads(10), list(range(AF, AF + 40)) + [17], 18)
for k in range(4):
    e(f"v_mov_b32 v{8+k}, 0")
e.label(lj)
for kk in range(10):
    e(f"v_mfma_f32_16x16x32_bf16 v[8:11], v[{AF+4*kk}:{AF+4*kk+3}], v[{F0+4*kk}:{F0+4*kk+3}], v[8:11]")
e("s_lshl_b32 s10, s3, 10")
e("v_lshl_add_u32 v5, v1, 4, s10")
e(f"ds_write_b128 v5, v[8:11] offset:{L_DP}")
e("s_waitcnt lgkmcnt(0)")
e("s_barrier")
lend = newlab("dnend")
e("s_cmp_eq_u32 s3, 0")
e(f"s_cbranch_scc0 {lend}")
e("v_lshlrev_b32 v5, 5, v4")
e("v_lshl_add_u32 v5, v6, 2, v5")
for w in range(4):
    e(f"v_add_u32 v19, {L_DP + w*1024}, v5")
    e(f"ds_read2_b32 v[{8+2*w}:{9+2*w}], v19 offset0:0 offset1:4")
e("s_waitcnt lgkmcnt(0)")
for k in range(2):
    e(f"v_add_f32 v{8+k}, v{8+k}, v{10+k}")
    e(f"v_add_f32 v{12+k}, v{12+k}, v{14+k}")
for k in range(2):
    e(f"v_add_f32 v{8+k}, v{8+k}, v{12+k}")
rnd2(8, 9, 24)
e("v_lshlrev_b32 v10, 16, v17")
e("v_and_b32 v11, 0xffff0000, v17")
e("v_add_f32 v8, v8, v10")
e("v_add_f32 v9, v9, v11")
e("v_cvt_pk_bf16_f32 v8, v8, v9")
e("s_mov_b32 exec_hi, 0")
e("global_store_dword v7, v8, s[34:35]")
e("s_mov_b64 exec, -1")
stamp(12)
e.label(lend)
e.raw("L_END:")
e("s_endpgm")

e.raw('.section .rodata,"a"')
e.raw(".p2align 6")
e.raw(f".amdhsa_kernel {NAME}_kernel")
e.raw("  .amdhsa_next_free_vgpr 168")
e.raw("  .amdhsa_next_free_sgpr 102")
e.raw("  .amdhsa_accum_offset 168")
e.raw("  .amdhsa_group_segment_fixed_size 0")
e.raw("  .amdhsa_kernarg_size 96")
e.raw("  .amdhsa_user_sgpr_count 2")
e.raw("  .amdhsa_user_sgpr_kernarg_segment_ptr 1")
e.raw("  .amdhsa_system_sgpr_workgroup_id_x 1")
e.raw(".end_amdhsa_kernel")

open(OUT, "w").write(e.text())
print("wrote", OUT, "lines", len(e.lines), "nops", e.nops_inserted)
```

```python
import sys, struct
from emit import Emitter, VmQueue

NAME = "sequential_preLN__sliding_block_cached__swiglu_ffn__decode"
OUT = sys.argv[1] if len(sys.argv) > 1 else f"cdna_kernels/{NAME}.s"

OPT = dict(kv_nt=" nt", w_nt=" nt", f_nt="", sleep=0, stamp=0, vearly=1, nowo=0)
for a in sys.argv[2:]:
    k, v = a.split("=")
    OPT[k] = int(v) if v.lstrip("-").isdigit() else ((" " + v) if v else "")


def f32(x):
    return "0x%08x" % struct.unpack("<I", struct.pack("<f", x))[0]


LOG2E = f32(1.4426950408889634)
CSC = f32(128 ** -0.5)
EPS = f32(1e-5)
INV512 = f32(1.0 / 512)

ML_OFF = 2048
H_OFF = 0x100000
ACT_OFF = 0x101000
Q_OFF = 0x104000
WS_SZ = 0x10C000
OOB = 0x7FFF0000

L_Q = 0
L_ST = 256
L_CT = 320
L_HS = 336
L_OP = 512
L_YP = 4608
L_DP = 12800
L_H = 20992
L_FW = 25088
L_XN = L_DP
L_QP = L_DP + 2048
LDS_BYTES = L_FW + 45056

e = Emitter()
lab_id = [0]


def newlab(p):
    lab_id[0] += 1
    return f"L_{p}_{lab_id[0]}"


def xrow_reduce(v, op, t):
    e(f"v_mov_b32 v{t}, v{v}")
    e(f"v_permlane16_swap_b32 v{v}, v{t}")
    e(f"{op} v{v}, v{v}, v{t}")
    e(f"v_mov_b32 v{t}, v{v}")
    e(f"v_permlane32_swap_b32 v{v}, v{t}")
    e(f"{op} v{v}, v{v}, v{t}")


def rnd1(v, t):
    e(f"v_cvt_pk_bf16_f32 v{t}, v{v}, v{v}")
    e(f"v_lshlrev_b32 v{v}, 16, v{t}")


def rnd2(a, b, t):
    e(f"v_cvt_pk_bf16_f32 v{t}, v{a}, v{b}")
    e(f"v_lshlrev_b32 v{a}, 16, v{t}")
    e(f"v_and_b32 v{b}, 0xffff0000, v{t}")


def halving8(a):
    for i in range(4):
        e(f"v_permlane32_swap_b32 v{a+i}, v{a+4+i}")
    for i in range(4):
        e(f"v_add_f32 v{a+i}, v{a+i}, v{a+4+i}")
    e(f"v_permlane16_swap_b32 v{a}, v{a+2}")
    e(f"v_permlane16_swap_b32 v{a+1}, v{a+3}")
    e(f"v_add_f32 v{a}, v{a}, v{a+2}")
    e(f"v_add_f32 v{a+1}, v{a+1}, v{a+3}")


def canon(v, vnan):
    e(f"v_cmp_eq_u32 vcc, -1, v{v}")
    e(f"v_cndmask_b32 v{v}, v{v}, v{vnan}, vcc")


def maxu_tree(regs, t):
    regs = list(regs)
    if len(regs) == 1:
        e(f"v_mov_b32 v{t}, v{regs[0]}")
        return
    if len(regs) == 2:
        e(f"v_max_u32 v{t}, v{regs[0]}, v{regs[1]}")
        return
    e(f"v_max3_u32 v{t}, v{regs[0]}, v{regs[1]}, v{regs[2]}")
    k = 3
    while k < len(regs):
        if k + 1 < len(regs):
            e(f"v_max3_u32 v{t}, v{t}, v{regs[k]}, v{regs[k+1]}")
            k += 2
        else:
            e(f"v_max_u32 v{t}, v{t}, v{regs[k]}")
            k += 1


def poll(load_fn, regs, t, sleep=None):
    lp = newlab("poll")
    dn = newlab("polldone")
    e("s_mov_b32 s14, 0")
    e.label(lp)
    load_fn()
    e("s_waitcnt vmcnt(0)")
    maxu_tree(regs, t)
    e(f"v_cmp_eq_u32 vcc, -1, v{t}")
    e("s_nop 4")
    e(f"s_cbranch_vccz {dn}")
    e("s_add_u32 s14, s14, 1")
    e("s_cmp_gt_u32 s14, 400000")
    e(f"s_cbranch_scc1 {dn}")
    e(f"s_sleep {OPT['sleep'] if sleep is None else sleep}")
    e(f"s_branch {lp}")
    e.label(dn)


SR = [164]


def stamp(idx, cond_wave=0):
    if not OPT["stamp"]:
        return
    R = SR[0]
    l = newlab("st")
    e(f"s_cmp_eq_u32 s3, {cond_wave}")
    e(f"s_cbranch_scc0 {l}")
    e("s_memrealtime s[98:99]")
    e("s_lshl_b32 s100, s2, 8")
    e(f"s_add_u32 s100, s100, {0x200000 + idx*8}")
    e("s_waitcnt lgkmcnt(0)")
    e(f"v_mov_b32 v{R}, s98")
    e(f"v_mov_b32 v{R+1}, s99")
    e(f"v_mov_b32 v{R+2}, s100")
    e("s_mov_b64 exec, 1")
    e(f"global_store_dwordx2 v{R+2}, v[{R}:{R+1}], s[38:39]")
    e("s_mov_b64 exec, -1")
    e.label(l)


def clr_check():
    lp = newlab("cnt")
    dn = newlab("cntdone")
    e("s_mov_b32 s14, 0")
    e("s_waitcnt vmcnt(0)")
    e.label(lp)
    e("v_cmp_gt_u32 vcc, 0x100, v31")
    e("s_nop 4")
    e(f"s_cbranch_vccz {dn}")
    e("s_add_u32 s14, s14, 1")
    e("s_cmp_gt_u32 s14, 100000")
    e(f"s_cbranch_scc1 {dn}")
    e("s_sleep 32")
    e("v_mov_b32 v31, 0")
    e("global_load_dword v31, v31, s[36:37] sc1")
    e("s_waitcnt vmcnt(0)")
    e(f"s_branch {lp}")
    e.label(dn)


def srd(d, lo, size):
    e(f"s_mov_b32 s{d}, s{lo}")
    e(f"s_and_b32 s{d+1}, s{lo+1}, 0xffff")
    e(f"s_mov_b32 s{d+2}, {size}")
    e(f"s_mov_b32 s{d+3}, 0x20000")


def red_b4(v):
    e(f"v_add_f32 v{v}, v{v}, v{v} row_ror:8")
    e(f"v_add_f32 v{v}, v{v}, v{v} row_ror:4")
    xrow_reduce(v, "v_add_f32", 7)


def ln_stats(X, vs, vt, vmb, vden, vr):
    e(f"v_add_f32 v{vs}, v{X}, v{X+1}")
    e(f"v_add_f32 v{vt}, v{X+2}, v{X+3}")
    for k in range(4, 32, 2):
        e(f"v_add_f32 v{vs}, v{vs}, v{X+k}")
        e(f"v_add_f32 v{vt}, v{vt}, v{X+k+1}")
    e(f"v_add_f32 v{vs}, v{vs}, v{vt}")
    red_b4(vs)
    e(f"v_mul_f32 v{vs}, {INV512}, v{vs}")
    e(f"v_mov_b32 v{vmb}, v{vs}")
    rnd1(vmb, vt)
    for k in range(32):
        e(f"v_sub_f32 v{X+k}, v{X+k}, v{vs}")
    e(f"v_mul_f32 v{vden}, v{X}, v{X}")
    e(f"v_mul_f32 v{vr}, v{X+1}, v{X+1}")
    for k in range(2, 32, 2):
        e(f"v_fmac_f32 v{vden}, v{X+k}, v{X+k}")
        e(f"v_fmac_f32 v{vr}, v{X+k+1}, v{X+k+1}")
    e(f"v_add_f32 v{vden}, v{vden}, v{vr}")
    red_b4(vden)
    e(f"v_mul_f32 v{vden}, {INV512}, v{vden}")
    rnd1(vden, vt)
    e(f"v_add_f32 v{vden}, {EPS}, v{vden}")
    rnd1(vden, vt)
    e(f"v_sqrt_f32 v{vden}, v{vden}")
    rnd1(vden, vt)
    e(f"v_rcp_f32 v{vr}, v{vden}")


def ln_apply_frags(HF, HX, vmb, vden, vr, T):
    for k in range(16):
        e(f"v_lshlrev_b32 v{HX+2*k}, 16, v{HF+k}")
        e(f"v_and_b32 v{HX+2*k+1}, 0xffff0000, v{HF+k}")
    for k in range(32):
        e(f"v_sub_f32 v{HX+k}, v{HX+k}, v{vmb}")
    for k in range(16):
        rnd2(HX + 2 * k, HX + 2 * k + 1, HF + k)
    for k0 in range(0, 32, 4):
        for j in range(4):
            e(f"v_mul_f32 v{T+j}, v{HX+k0+j}, v{vr}")
        for j in range(4):
            e(f"v_fma_f32 v{T+4+j}, -v{T+j}, v{vden}, v{HX+k0+j}")
        for j in range(4):
            e(f"v_fma_f32 v{HX+k0+j}, v{T+4+j}, v{vr}, v{T+j}")
    for k in range(16):
        e(f"v_cvt_pk_bf16_f32 v{HF+k}, v{HX+2*k}, v{HX+2*k+1}")


def tr_addr(v, t):
    e(f"v_lshrrev_b32 v{v}, 2, v3")
    e(f"v_lshl_add_u32 v{v}, v2, 3, v{v}")
    e(f"v_lshlrev_b32 v{v}, 5, v{v}")
    e(f"v_and_b32 v{t}, 3, v3")
    e(f"v_lshl_add_u32 v{v}, v{t}, 3, v{v}")


hdr = open(f"cdna_kernels/{NAME}.s.ref").read().split("\n")
head_lines = []
for ln in hdr:
    if ln.startswith("; @launch"):
        head_lines.append(f"; @launch grid=(256,1,1) block=(768,1,1) lds={LDS_BYTES}")
    elif ln.startswith(";"):
        head_lines.append(ln)
    else:
        break
e.raw("\n".join(head_lines))
e.raw('.amdgcn_target "amdgcn-amd-amdhsa--gfx950"')
e.raw(".text")
e.raw(f".globl {NAME}_kernel")
e.raw(".p2align 8")
e.raw(f".type {NAME}_kernel,@function")
e.raw(f"{NAME}_kernel:")

e("s_cmp_ge_u32 s2, 256")
e("s_cbranch_scc1 L_END")
if OPT["stamp"]:
    e("s_memrealtime s[90:91]")
e("s_load_dwordx16 s[16:31], s[0:1], 0")
e("s_load_dwordx8 s[32:39], s[0:1], 64")
e("v_lshrrev_b32 v4, 6, v0")
e("v_and_b32 v1, 63, v0")
e("v_readfirstlane_b32 s3, v4")
e("v_lshrrev_b32 v2, 4, v1")
e("v_and_b32 v3, 15, v1")
e("s_and_b32 s4, s2, 7")
e("s_lshr_b32 s5, s2, 3")
e("s_and_b32 s6, s5, 3")
e("s_lshl_b32 s6, s6, 3")
e("s_add_u32 s6, s6, s4")
e("s_lshr_b32 s7, s2, 5")
e("s_lshr_b32 s8, s7, 1")
e("s_and_b32 s9, s7, 1")
e(f"s_mov_b32 s96, {LOG2E}")
e(f"s_mov_b32 s97, {CSC}")
e("s_cmp_lt_u32 s3, 4")
e("s_cbranch_scc1 L_SERVICE")

AL, Q0, S0, A0, T0, MR, LR = 9, 10, 14, 22, 30, 38, 39
KSS, VSS = [40, 104], [72, 136]
SR[0] = T0
XV = 1 if OPT["stamp"] else 0
e("s_sub_u32 s3, s3, 4")
e("s_lshl_b32 s10, s8, 5")
e("s_add_u32 s10, s10, s6")
e("s_lshl_b32 s10, s10, 21")
e("s_lshl_b32 s11, s9, 18")
e("s_add_u32 s10, s10, s11")
e("s_add_u32 s10, s10, 0x180000")
e("v_lshlrev_b32 v4, 4, v1")
e("s_lshl_b32 s12, s3, 13")
e("s_add_u32 s13, s12, 4096")
e("s_waitcnt lgkmcnt(0)")
e("s_add_u32 s40, s18, s10")
e("s_addc_u32 s41, s19, 0")
e("s_and_b32 s41, s41, 0xffff")
e("s_mov_b32 s42, 0x40000")
e("s_mov_b32 s43, 0x20000")
e("s_add_u32 s44, s20, s10")
e("s_addc_u32 s45, s21, 0")
e("s_and_b32 s45, s45, 0xffff")
e("s_mov_b32 s46, 0x40000")
e("s_mov_b32 s47, 0x20000")


def kv_load(st, isv, k):
    sr = "s[44:47]" if isv else "s[40:43]"
    r = (VSS[st] if isv else KSS[st]) + 4 * k
    so = "s13" if k >= 4 else "s12"
    e(f"buffer_load_dwordx4 v[{r}:{r+3}], v4, {sr}, {so} offen offset:{(k&3)*1024}{OPT['kv_nt']}")


if OPT["stamp"]:
    l = newlab("st")
    e("s_cmp_eq_u32 s3, 0")
    e(f"s_cbranch_scc0 {l}")
    e("s_lshl_b32 s100, s2, 8")
    e(f"s_add_u32 s100, s100, {0x200000 + 13*8}")
    e(f"v_mov_b32 v{T0}, s90")
    e(f"v_mov_b32 v{T0+1}, s91")
    e(f"v_mov_b32 v{T0+2}, s100")
    e("s_mov_b64 exec, 1")
    e(f"global_store_dwordx2 v{T0+2}, v[{T0}:{T0+1}], s[38:39]")
    e("s_mov_b64 exec, -1")
    e.label(l)
e("s_barrier")
for k in range(8):
    kv_load(0, 0, k)
e("v_lshlrev_b32 v5, 5, v3")
e(f"v_mov_b32 v{MR}, 0xff7fffff")
e(f"v_mov_b32 v{LR}, 0")
e("v_mov_b32 v6, 0")
e("v_mov_b32 v7, 1")
e("s_barrier")
for k in range(8):
    kv_load(0, 1, k)
e(f"ds_read_b128 v[{A0}:{A0+3}], v5 offset:{L_QP}")
e(f"ds_read_b128 v[{A0+4}:{A0+7}], v5 offset:{L_QP+16}")
e(f"ds_read_b128 v[{S0}:{S0+3}], v5 offset:{L_QP+512}")
e(f"ds_read_b128 v[{S0+4}:{S0+7}], v5 offset:{L_QP+512+16}")
e(f"ds_read_b128 v[{T0}:{T0+3}], v5 offset:{L_QP+1024}")
e(f"ds_read_b128 v[{T0+4}:{T0+7}], v5 offset:{L_QP+1024+16}")
e("s_waitcnt lgkmcnt(0)")
for k in range(8):
    e(f"v_add_f32 v{A0+k}, v{A0+k}, v{S0+k}")
e(f"ds_read_b128 v[{S0}:{S0+3}], v5 offset:{L_QP+1536}")
e(f"ds_read_b128 v[{S0+4}:{S0+7}], v5 offset:{L_QP+1536+16}")
for k in range(8):
    e(f"v_add_f32 v{A0+k}, v{A0+k}, v{T0+k}")
e("s_waitcnt lgkmcnt(0)")
for k in range(8):
    e(f"v_add_f32 v{A0+k}, v{A0+k}, v{S0+k}")
for t in range(4):
    e(f"v_cvt_pk_bf16_f32 v{Q0+t}, v{A0+2*t}, v{A0+2*t+1}")
for k in range(8):
    e(f"v_mov_b32 v{A0+k}, 0")


def phase(st, sid):
    KS, VS = KSS[st], VSS[st]
    e("s_mov_b64 exec, 1")
    e(f"ds_add_rtn_u32 v8, v6, v7 offset:{L_CT}")
    e("s_mov_b64 exec, -1")
    for g0 in (0, 4):
        e("s_waitcnt vmcnt(12)")
        for t in range(4):
            for k in range(4):
                r = KS + 4 * (g0 + k)
                d = S0 + g0 + k
                if t == 0:
                    e(f"v_dot2_f32_bf16 v{d}, v{r}, v{Q0}, 0")
                else:
                    e(f"v_dot2c_f32_bf16 v{d}, v{r+t}, v{Q0+t}")
        if g0 == 0:
            e("s_waitcnt lgkmcnt(0)")
            e(f"v_readfirstlane_b32 {sid}, v8")
            e("s_nop 3")
            e(f"s_lshl_b32 s12, {sid}, 13")
            e("s_add_u32 s13, s12, 4096")
        for k in range(4):
            kv_load(st, 0, g0 + k)
    for r in (8, 4, 2, 1):
        for k in range(8):
            e(f"v_add_f32 v{S0+k}, v{S0+k}, v{S0+k} row_ror:{r}")
    for k in range(0, 8, 2):
        rnd2(S0 + k, S0 + k + 1, T0 + k // 2)
    for k in range(8):
        e(f"v_mul_f32 v{S0+k}, s97, v{S0+k}")
    for k in range(0, 8, 2):
        rnd2(S0 + k, S0 + k + 1, T0 + k // 2)
    e(f"v_max3_f32 v{T0}, v{S0}, v{S0+1}, v{S0+2}")
    e(f"v_max3_f32 v{T0+1}, v{S0+3}, v{S0+4}, v{S0+5}")
    e(f"v_max3_f32 v{T0+2}, v{S0+6}, v{S0+7}, v{MR}")
    e(f"v_max3_f32 v{T0}, v{T0}, v{T0+1}, v{T0+2}")
    e(f"v_sub_f32 v{AL}, v{MR}, v{T0}")
    e(f"v_mov_b32 v{MR}, v{T0}")
    for k in range(8):
        e(f"v_sub_f32 v{S0+k}, v{S0+k}, v{MR}")
    e(f"v_mul_f32 v{AL}, s96, v{AL}")
    for k in range(8):
        e(f"v_mul_f32 v{S0+k}, s96, v{S0+k}")
    e(f"v_exp_f32 v{AL}, v{AL}")
    for k in range(8):
        e(f"v_exp_f32 v{S0+k}, v{S0+k}")
    e(f"v_mul_f32 v{LR}, v{LR}, v{AL}")
    for k in range(8):
        e(f"v_mul_f32 v{A0+k}, v{A0+k}, v{AL}")
    e(f"v_add_f32 v{T0}, v{S0}, v{S0+1}")
    e(f"v_add_f32 v{T0+1}, v{S0+2}, v{S0+3}")
    e(f"v_add_f32 v{T0+2}, v{S0+4}, v{S0+5}")
    e(f"v_add_f32 v{T0+3}, v{S0+6}, v{S0+7}")
    e(f"v_add_f32 v{T0}, v{T0}, v{T0+1}")
    e(f"v_add_f32 v{T0+2}, v{T0+2}, v{T0+3}")
    e(f"v_add_f32 v{LR}, v{LR}, v{T0}")
    e(f"v_add_f32 v{LR}, v{LR}, v{T0+2}")
    for k in range(8):
        e(f"v_cvt_pk_bf16_f32 v{S0+k}, v{S0+k}, 0")
    for k in range(8):
        e(f"v_lshlrev_b32 v{T0+k}, 16, v{S0+k}")
    for k0 in range(0, 8, 2):
        e("s_waitcnt vmcnt(14)")
        for k in (k0, k0 + 1):
            r = VS + 4 * k
            for t in range(4):
                e(f"v_dot2c_f32_bf16 v{A0+2*t}, v{r+t}, v{S0+k}")
                e(f"v_dot2c_f32_bf16 v{A0+2*t+1}, v{r+t}, v{T0+k}")
        for k in (k0, k0 + 1):
            kv_load(st, 1, k)


e.label("L_SLOOP")
phase(0, "s14")
e("s_cmp_lt_u32 s14, 32")
e.fence()
e("s_cbranch_scc1 L_SLOOP")
e.label("L_SDONE")
e(f"v_mov_b32 v{T0}, v{MR}")
xrow_reduce(T0, "v_max_f32", T0 + 2)
e(f"v_sub_f32 v{AL}, v{MR}, v{T0}")
e(f"v_mul_f32 v{AL}, s96, v{AL}")
e(f"v_exp_f32 v{AL}, v{AL}")
e(f"v_mul_f32 v{T0+1}, v{LR}, v{AL}")
for k in range(8):
    e(f"v_mul_f32 v{A0+k}, v{A0+k}, v{AL}")
xrow_reduce(T0 + 1, "v_add_f32", T0 + 2)
halving8(A0)
e("s_lshl_b32 s11, s3, 3")
e("v_mov_b32 v6, s11")
e(f"ds_write_b64 v6, v[{T0}:{T0+1}] offset:{L_ST}")
e("s_lshl_b32 s11, s3, 9")
e("v_lshlrev_b32 v5, 5, v3")
e("v_lshl_add_u32 v6, v2, 3, v5")
e("v_add_u32 v6, s11, v6")
e(f"ds_write_b64 v6, v[{A0}:{A0+1}] offset:{L_OP}")
e("s_waitcnt lgkmcnt(0)")
stamp(4)
e("s_barrier")
e("s_endpgm")
SR[0] = 164

e.fence()
e.raw("L_SERVICE:")
W0 = 32
F0 = 96
e("s_lshl_b32 s93, s8, 6")
e("s_lshl_b32 s10, s6, 1")
e("s_add_u32 s93, s93, s10")
e("s_add_u32 s93, s93, s9")
e("s_lshl_b32 s93, s93, 12")
e("s_mov_b32 s94, 0")
e("s_mul_i32 s95, s4, 11")
e("s_add_u32 s95, s95, s5")
e("s_cmp_lt_u32 s5, 11")
e("s_cselect_b32 s10, 1, 0")
e("s_cmp_lt_u32 s95, 86")
e("s_cselect_b32 s11, 1, 0")
e("s_and_b32 s94, s10, s11")
e("s_sub_u32 s10, s5, 11")
e("s_cmp_lt_u32 s10, 4")
lr = newlab("role")
e(f"s_cbranch_scc0 {lr}")
e("s_mov_b32 s94, 2")
e("s_lshl_b32 s95, s4, 2")
e("s_add_u32 s95, s95, s10")
e.label(lr)
lr2 = newlab("role")
e("s_sub_u32 s10, s5, 16")
e("s_cmp_lt_u32 s10, 8")
e(f"s_cbranch_scc0 {lr2}")
e("s_mov_b32 s94, 3")
e("s_lshl_b32 s95, s10, 3")
e("s_add_u32 s95, s95, s4")
e.label(lr2)
e("s_lshl_b32 s12, s95, 6")
e("s_and_b32 s12, s12, 0xfff")
e(f"s_add_u32 s13, s12, {H_OFF}")
HS, HF, HX = 32, 48, 64
e("s_lshl_b32 s10, s8, 10")
e("v_lshl_add_u32 v5, v1, 4, s10")
e("s_lshl_b32 s10, s3, 20")
e("s_lshl_b32 s11, s6, 8")
e("s_add_u32 s10, s10, s11")
e("v_lshlrev_b32 v4, 18, v2")
e("v_lshl_add_u32 v4, v3, 4, v4")
e("v_add_u32 v4, s10, v4")
e("s_waitcnt lgkmcnt(0)")
srd(48, 38, WS_SZ)
srd(40, 22, 0x400000)
srd(44, 24, 0x400000)
lc = newlab("noclr")
e("s_cmp_eq_u32 s3, %d" % (3 if not OPT["noclr"] else 77))
e(f"s_cbranch_scc0 {lc}")
for k in range(160, 164):
    e(f"v_mov_b32 v{k}, -1")
e("v_lshl_add_u32 v11, v1, 4, s93")
e("buffer_store_dwordx4 v[160:163], v11, s[48:51], 0 offen sc1")
e("buffer_store_dwordx4 v[160:163], v11, s[48:51], 0 offen offset:1024 sc1")
e(f"v_mov_b32 v16, {OOB}")
e(f"s_add_u32 s10, s93, {ML_OFF}")
e("v_mov_b32 v17, s10")
e("v_cmp_eq_u32 vcc, 0, v1")
e("v_cndmask_b32 v16, v16, v17, vcc")
e("v_and_b32 v18, 7, v1")
e("v_lshrrev_b32 v19, 1, v18")
e("v_and_b32 v18, 1, v18")
e("v_lshrrev_b32 v20, 3, v1")
e("s_lshl_b32 s10, s95, 5")
e(f"s_add_u32 s10, s10, {ACT_OFF}")
e("s_cmp_eq_u32 s94, 1")
e(f"s_cselect_b32 s10, s10, {OOB}")
e("v_mul_u32_u24 v17, 2752, v19")
e("v_lshl_add_u32 v17, v18, 4, v17")
e("v_add_u32 v17, s10, v17")
e("v_cmp_eq_u32 vcc, 2, v20")
e("v_cndmask_b32 v16, v16, v17, vcc")
e("s_cmp_eq_u32 s94, 3")
e(f"s_cselect_b32 s10, s13, {OOB}")
e("v_subrev_u32 v17, 24, v1")
e("v_cmp_gt_u32 vcc, 4, v17")
e("v_lshl_add_u32 v17, v17, 4, s10")
e("v_cndmask_b32 v16, v16, v17, vcc")
e("buffer_store_dwordx4 v[160:163], v16, s[48:51], 0 offen sc1")
e.label(lc)
e("global_load_dwordx4 v[12:15], v5, s[16:17]")
for i in range(32):
    e(f"s_mov_b32 s10, {i*8192}")
    e(f"buffer_load_dwordx4 v[{W0+4*i}:{W0+4*i+3}], v4, s[40:43], s10 offen{OPT['w_nt']}")
e("s_barrier")
e("s_waitcnt vmcnt(32)")
X = 16
for t in range(4):
    e(f"v_lshlrev_b32 v{X+2*t}, 16, v{12+t}")
    e(f"v_and_b32 v{X+2*t+1}, 0xffff0000, v{12+t}")


def allred(v):
    for r in (8, 4, 2, 1):
        e(f"v_add_f32 v{v}, v{v}, v{v} row_ror:{r}")
    xrow_reduce(v, "v_add_f32", 7)


e(f"v_add_f32 v24, v{X}, v{X+1}")
e(f"v_add_f32 v25, v{X+2}, v{X+3}")
e(f"v_add_f32 v26, v{X+4}, v{X+5}")
e(f"v_add_f32 v27, v{X+6}, v{X+7}")
e("v_add_f32 v24, v24, v25")
e("v_add_f32 v26, v26, v27")
e("v_add_f32 v24, v24, v26")
allred(24)
e(f"v_mul_f32 v24, {INV512}, v24")
e("v_mov_b32 v26, v24")
rnd1(26, 25)
for k in range(8):
    e(f"v_sub_f32 v{8+k}, v{X+k}, v24")
e("v_mul_f32 v27, v8, v8")
for k in range(1, 8):
    e(f"v_fmac_f32 v27, v{8+k}, v{8+k}")
allred(27)
e(f"v_mul_f32 v27, {INV512}, v27")
rnd1(27, 25)
e(f"v_add_f32 v27, {EPS}, v27")
rnd1(27, 25)
e("v_sqrt_f32 v27, v27")
rnd1(27, 25)
e("v_rcp_f32 v28, v27")
for k in range(8):
    e(f"v_sub_f32 v{X+k}, v{X+k}, v26")
for k in range(0, 8, 2):
    rnd2(X + k, X + k + 1, 24)
for k in range(8):
    e(f"v_mul_f32 v{8+k}, v{X+k}, v28")
for k in range(8):
    e(f"v_fma_f32 v{X+k}, -v{8+k}, v27, v{X+k}")
for k in range(8):
    e(f"v_fma_f32 v{X+k}, v{X+k}, v28, v{8+k}")
for k in range(0, 8, 2):
    rnd2(X + k, X + k + 1, 24)
e("v_lshlrev_b32 v5, 5, v1")
e(f"ds_write_b128 v5, v[{X}:{X+3}] offset:{L_XN}")
e(f"ds_write_b128 v5, v[{X+4}:{X+7}] offset:{L_XN+16}")
e("s_lshl_b32 s10, s3, 9")
e("v_lshl_add_u32 v5, v2, 7, s10")
e("s_waitcnt lgkmcnt(0)")
QA = 8
for k in range(8):
    e(f"v_mov_b32 v{QA+k}, 0")
for i in range(32):
    if i % 4 == 0:
        e(f"ds_read_b128 v[{X}:{X+3}], v5 offset:{L_XN + i*4}")
        e(f"s_waitcnt vmcnt({28 - i})")
        e("s_waitcnt lgkmcnt(0)")
        for k in range(4):
            e(f"v_lshrrev_b32 v{X+4+k}, 16, v{X+k}")
    sl = W0 + 4 * i
    for t in range(4):
        e(f"v_dot2c_f32_bf16 v{QA+2*t}, v{sl+t}, v{X+4+(i%4)}")
        e(f"v_dot2c_f32_bf16 v{QA+2*t+1}, v{sl+t}, v{X+(i%4)}")
lc2 = newlab("noadd")
e("s_cmp_eq_u32 s3, 3")
e(f"s_cbranch_scc0 {lc2}")
e("v_mov_b32 v16, 0")
e("v_mov_b32 v17, 1")
e("s_mov_b64 exec, 1")
e("global_atomic_add v16, v17, s[36:37]")
e("s_mov_b64 exec, -1")
e.label(lc2)
halving8(QA)
e("v_lshlrev_b32 v5, 5, v3")
e("v_lshl_add_u32 v5, v2, 3, v5")
e("s_lshl_b32 s10, s3, 9")
e("v_add_u32 v6, s10, v5")
e(f"ds_write_b64 v6, v[{QA}:{QA+1}] offset:{L_QP}")
e("v_mov_b32 v6, 0")
e("v_mov_b32 v7, 8")
e(f"ds_write_b32 v6, v7 offset:{L_CT}")
e("s_waitcnt lgkmcnt(0)")
stamp(1)
e("s_barrier")
e("v_mov_b32 v30, 0x7fc00000")
e("v_mov_b32 v29, 0x7fc07fc0")
e("v_lshl_add_u32 v5, v2, 4, s12")
e("global_load_dwordx4 v[160:163], v5, s[16:17]")
e("v_lshrrev_b32 v5, 1, v1")
e("v_and_b32 v6, 1, v1")
lgu = newlab("ldgu")
lfe = newlab("ldend")
e("s_cmp_eq_u32 s94, 1")
e(f"s_cbranch_scc1 {lgu}")
srd(52, 32, 1376 * 1024)
srd(56, 32, 1376 * 1024)
e("s_mul_i32 s10, s3, 352")
e("v_add_u32 v4, s10, v5")
e("v_lshlrev_b32 v4, 10, v4")
e(f"s_branch {lfe}")
e.label(lgu)
srd(52, 28, 512 * 2752)
srd(56, 30, 512 * 2752)
e("s_lshl_b32 s10, s3, 7")
e("v_add_u32 v4, s10, v5")
e("v_mul_u32_u24 v4, 2752, v4")
e.label(lfe)
e("v_lshl_add_u32 v4, v6, 4, v4")
e("s_lshl_b32 s10, s95, 5")
e("v_add_u32 v167, s10, v4")
e("v_mov_b32 v6, 0")
lp = newlab("wow")
dn = newlab("wowdone")
e.label(lp)
e(f"ds_read_b32 v7, v6 offset:{L_CT}")
e("s_waitcnt lgkmcnt(0)")
e("v_readfirstlane_b32 s10, v7")
e("s_nop 3")
e(f"s_cmp_ge_u32 s10, {OPT['wotrig']}")
e(f"s_cbranch_scc1 {dn}")
e("s_sleep 8")
e(f"s_branch {lp}")
e.label(dn)
e("s_lshl_b32 s10, s6, 7")
e("s_lshl_b32 s11, s3, 5")
e("s_add_u32 s10, s10, s11")
e("s_lshl_b32 s10, s10, 10")
e("v_lshl_add_u32 v4, v1, 4, s10")
for r in range(32 if not OPT["nowo"] else 0):
    if r % 4 == 0:
        e(f"s_mov_b32 s10, {(r//4)*4096}")
    e(f"buffer_load_dwordx4 v[{W0+4*r}:{W0+4*r+3}], v4, s[44:47], s10 offen offset:{(r%4)*1024}{OPT['w_nt']}")
e("s_mov_b32 s10, 0x05040100")
e("s_mov_b32 s11, 0x07060302")
for j in range(16):
    e(f"s_waitcnt vmcnt({30-2*j})")
    for t in range(4):
        A, B = W0 + 8 * j + t, W0 + 8 * j + 4 + t
        e(f"v_perm_b32 v{8+t}, v{B}, v{A}, s10")
        e(f"v_perm_b32 v{B}, v{B}, v{A}, s11")
    for t in range(4):
        e(f"v_mov_b32 v{W0+8*j+t}, v{8+t}")
stamp(6)
e("v_mov_b32 v6, 0")
e("v_and_b32 v4, 31, v1")
e("s_lshl_b32 s10, s3, 7")
e("v_lshl_add_u32 v5, v4, 2, s10")
e("s_barrier")
stamp(5)
e("v_mov_b32 v31, 0x100")
lk = newlab("nock")
e("s_cmp_eq_u32 s3, 0")
e(f"s_cbranch_scc0 {lk}")
e("s_cmp_eq_u32 s94, 0")
e(f"s_cbranch_scc1 {lk}")
e("global_load_dword v31, v6, s[36:37] sc1")
e.label(lk)
for k in range(4):
    e(f"ds_read_b128 v[{8+4*k}:{11+4*k}], v6 offset:{L_ST+16*k}")
OWL = [24, 25, 26, 27, 28, 166, 4, 7]
for w in range(8):
    e(f"ds_read_b32 v{OWL[w]}, v5 offset:{L_OP + w*512}")
e("s_waitcnt lgkmcnt(0)")
e("v_max3_f32 v164, v8, v10, v12")
e("v_max3_f32 v165, v14, v16, v18")
e("v_max3_f32 v164, v164, v20, v22")
e("v_max_f32 v164, v164, v165")
for k in range(8):
    e(f"v_sub_f32 v{8+2*k}, v{8+2*k}, v164")
for k in range(8):
    e(f"v_mul_f32 v{8+2*k}, s96, v{8+2*k}")
for k in range(8):
    e(f"v_exp_f32 v{8+2*k}, v{8+2*k}")
e("v_mul_f32 v165, v8, v9")
e(f"v_mul_f32 v9, v8, v{OWL[0]}")
for k in range(1, 8):
    e(f"v_fmac_f32 v165, v{8+2*k}, v{9+2*k}")
    e(f"v_fmac_f32 v9, v{8+2*k}, v{OWL[k]}")
e("v_rcp_f32 v27, v165")
e("v_mul_f32 v26, v9, v27")
e("v_mov_b32_dpp v27, v26 quad_perm:[1,0,3,2] row_mask:0xf bank_mask:0xf")
e("v_cvt_pk_bf16_f32 v26, v26, v27")
e("v_mov_b32 v24, v164")
e("v_mov_b32 v25, v165")
YA = 8
for k in range(8):
    e(f"v_mov_b32 v{YA+k}, 0")
for j in range(16):
    e(f"v_readlane_b32 s{60+j}, v26, {2*j}")
for j in range(16):
    for t in range(4):
        e(f"v_dot2c_f32_bf16 v{YA+2*t}, s{60+j}, v{W0+8*j+t}")
        e(f"v_dot2c_f32_bf16 v{YA+2*t+1}, s{60+j}, v{W0+8*j+4+t}")
e("s_lshl_b32 s10, s3, 11")
e("v_lshl_add_u32 v5, v1, 5, s10")
e(f"ds_write_b128 v5, v[{YA}:{YA+3}] offset:{L_YP}")
e(f"ds_write_b128 v5, v[{YA+4}:{YA+7}] offset:{L_YP+16}")
e("s_waitcnt lgkmcnt(0)")
e("s_barrier")
stamp(7)
lred = newlab("red")
lrole = newlab("role2")
lml = newlab("ml")
e("s_cmp_eq_u32 s3, 0")
e(f"s_cbranch_scc1 {lred}")
e("s_cmp_lt_u32 s3, 2")
e(f"s_cbranch_scc1 {lml}")
e("s_sub_u32 s10, s3, 2")
e("s_lshl_b32 s10, s10, 10")
e("v_lshl_add_u32 v5, v1, 4, s10")
for w in range(4):
    e(f"ds_read_b128 v[{8+4*w}:{11+4*w}], v5 offset:{L_YP + w*2048}")
e("s_waitcnt lgkmcnt(0)")
for k in range(4):
    e(f"v_add_f32 v{8+k}, v{8+k}, v{12+k}")
    e(f"v_add_f32 v{16+k}, v{16+k}, v{20+k}")
for k in range(4):
    e(f"v_add_f32 v{8+k}, v{8+k}, v{16+k}")
for k in range(4):
    canon(8 + k, 30)
e("v_add_u32 v5, s93, v5")
e("buffer_store_dwordx4 v[8:11], v5, s[48:51], 0 offen sc1")
e(f"s_branch {lrole}")
e.label(lml)
canon(24, 30)
canon(25, 30)
e(f"s_add_u32 s10, s93, {ML_OFF}")
e("v_mov_b32 v6, s10")
e("s_mov_b64 exec, 1")
e("buffer_store_dwordx2 v[24:25], v6, s[48:51], 0 offen sc1")
e("s_mov_b64 exec, -1")
e(f"s_branch {lrole}")
e.label(lred)
e("s_cmp_eq_u32 s94, 3")
e(f"s_cbranch_scc0 {lrole}")
e("s_lshr_b32 s10, s95, 4")
e("s_lshl_b32 s10, s10, 18")
e("v_lshl_add_u32 v6, v1, 12, s10")
e("s_and_b32 s11, s95, 15")
e("s_lshl_b32 s11, s11, 7")
e("v_add_u32 v5, s11, v6")
RY = 32
clr_check()


def red_loads():
    for k in range(8):
        e(f"buffer_load_dwordx4 v[{RY+4*k}:{RY+4*k+3}], v5, s[48:51], 0 offen offset:{16*k} sc1")
    e(f"buffer_load_dwordx2 v[16:17], v6, s[48:51], 0 offen offset:{ML_OFF} sc1")


poll(red_loads, list(range(RY, RY + 32)) + [16, 17], 18)
stamp(8)
e("v_mov_b32_dpp v18, v16 quad_perm:[1,0,3,2] row_mask:0xf bank_mask:0xf")
e("v_mov_b32_dpp v19, v17 quad_perm:[1,0,3,2] row_mask:0xf bank_mask:0xf")
e("v_max_f32 v20, v16, v18")
e("v_sub_f32 v16, v16, v20")
e("v_sub_f32 v18, v18, v20")
e("v_mul_f32 v16, s96, v16")
e("v_mul_f32 v18, s96, v18")
e("v_exp_f32 v16, v16")
e("v_exp_f32 v18, v18")
e("v_mul_f32 v16, v16, v17")
e("v_mul_f32 v18, v18, v19")
e("v_add_f32 v18, v16, v18")
e("v_rcp_f32 v18, v18")
e("v_mul_f32 v16, v16, v18")
for k in range(32):
    e(f"v_mul_f32 v{RY+k}, v{RY+k}, v16")
for i in range(16):
    e(f"v_permlane32_swap_b32 v{RY+i}, v{RY+16+i}")
for i in range(16):
    e(f"v_add_f32 v{RY+i}, v{RY+i}, v{RY+16+i}")
for i in range(8):
    e(f"v_permlane16_swap_b32 v{RY+i}, v{RY+8+i}")
for i in range(8):
    e(f"v_add_f32 v{RY+i}, v{RY+i}, v{RY+8+i}")
for r in (8, 4, 2, 1):
    for i in range(8):
        e(f"v_add_f32 v{RY+i}, v{RY+i}, v{RY+i} row_ror:{r}")
for i in range(0, 8, 2):
    rnd2(RY + i, RY + i + 1, 16)
for t in range(4):
    e(f"v_lshlrev_b32 v{RY+8+2*t}, 16, v{160+t}")
    e(f"v_and_b32 v{RY+9+2*t}, 0xffff0000, v{160+t}")
for i in range(8):
    e(f"v_add_f32 v{RY+i}, v{RY+i}, v{RY+8+i}")
for t in range(4):
    e(f"v_cvt_pk_bf16_f32 v{8+t}, v{RY+2*t}, v{RY+2*t+1}")
for t in range(4):
    canon(8 + t, 29)
e("v_lshl_add_u32 v5, v2, 4, s13")
e("s_mov_b32 exec_lo, 0x00010001")
e("s_mov_b32 exec_hi, 0x00010001")
e("buffer_store_dwordx4 v[8:11], v5, s[48:51], 0 offen sc1")
e("s_mov_b64 exec, -1")
e.label(lrole)
lA = newlab("dgu")
lB = newlab("ddn")
lC = newlab("dend")
e("s_cmp_eq_u32 s94, 1")
e(f"s_cbranch_scc1 {lA}")
e("s_cmp_eq_u32 s94, 2")
e(f"s_cbranch_scc1 {lB}")
e(f"s_branch {lC}")
e.label(lA)
e("s_lshl_b32 s11, s3, 12")
for i in range(4):
    e(f"s_add_u32 m0, s11, {L_FW + 1024*i}")
    e(f"s_mov_b32 s10, {i*32*2752}")
    e(f"buffer_load_dwordx4 v167, s[52:55], s10 offen lds{OPT['f_nt']}")
    e(f"s_add_u32 m0, s11, {L_FW + 16384 + 1024*i}")
    e("s_nop 0")
    e(f"buffer_load_dwordx4 v167, s[56:59], s10 offen lds{OPT['f_nt']}")
e(f"s_branch {lC}")
e.label(lB)
e("s_mul_i32 s11, s3, 11264")
for i in range(11):
    e(f"s_add_u32 m0, s11, {L_FW + 1024*i}")
    e(f"s_mov_b32 s10, {i*32*1024}")
    e(f"buffer_load_dwordx4 v167, s[52:55], s10 offen lds{OPT['f_nt']}")
e.label(lC)
lgu2 = newlab("gu")
ldn2 = newlab("dn")
tr_addr(7, 6)
clr_check()
e("s_cmp_eq_u32 s94, 1")
e(f"s_cbranch_scc1 {lgu2}")
e("s_cmp_eq_u32 s94, 2")
e(f"s_cbranch_scc1 {ldn2}")
e("s_endpgm")

e.label(lgu2)
e("s_lshl_b32 s10, s3, 12")
e("v_add_u32 v7, s10, v7")
for k in range(8):
    base = L_FW + (k // 4) * 16384 + (k % 4) * 1024
    e(f"ds_read_b64_tr_b16 v[{F0+4*k}:{F0+4*k+1}], v7 offset:{base}")
    e(f"ds_read_b64_tr_b16 v[{F0+4*k+2}:{F0+4*k+3}], v7 offset:{base+128}")
e("v_and_b32 v4, 3, v1")
e("v_lshlrev_b32 v4, 10, v4")
lg1 = newlab("gskip")
e("s_cmp_eq_u32 s3, 0")
e(f"s_cbranch_scc0 {lg1}")
e("v_lshrrev_b32 v5, 2, v1")
e("v_lshl_add_u32 v5, v5, 6, v4")
e(f"v_add_u32 v6, {H_OFF}, v5")


def h_loads():
    for k in range(4):
        e(f"buffer_load_dwordx4 v[{HS+4*k}:{HS+4*k+3}], v6, s[48:51], 0 offen offset:{16*k} sc1")


poll(h_loads, range(HS, HS + 16), 7)
stamp(9)
for k in range(4):
    e(f"ds_write_b128 v5, v[{HS+4*k}:{HS+4*k+3}] offset:{L_H + 16*k}")
for k in range(16):
    e(f"v_lshlrev_b32 v{HX+2*k}, 16, v{HS+k}")
    e(f"v_and_b32 v{HX+2*k+1}, 0xffff0000, v{HS+k}")
ln_stats(HX, 24, 25, 26, 27, 28)
e("v_and_b32 v5, 3, v1")
e("v_lshlrev_b32 v5, 4, v5")
e(f"ds_write_b96 v5, v[26:28] offset:{L_HS}")
e("s_waitcnt lgkmcnt(0)")
e.label(lg1)
e("s_barrier")
e("v_and_b32 v5, 3, v1")
e("v_lshlrev_b32 v5, 4, v5")
e(f"ds_read_b96 v[26:28], v5 offset:{L_HS}")
e("s_lshl_b32 s10, s3, 8")
e("v_lshl_add_u32 v6, v2, 4, v4")
e("v_add_u32 v6, s10, v6")
for k in range(4):
    e(f"ds_read_b128 v[{HF+4*k}:{HF+4*k+3}], v6 offset:{L_H + 64*k}")
e("s_waitcnt lgkmcnt(0)")
ln_apply_frags(HF, HX, 26, 27, 28, 16)
for kk in range(4):
    c = "0" if kk == 0 else "v[8:11]"
    e(f"v_mfma_f32_16x16x32_bf16 v[8:11], v[{HF+4*kk}:{HF+4*kk+3}], v[{F0+4*kk}:{F0+4*kk+3}], {c}")
    c = "0" if kk == 0 else "v[12:15]"
    e(f"v_mfma_f32_16x16x32_bf16 v[12:15], v[{HF+4*kk}:{HF+4*kk+3}], v[{F0+16+4*kk}:{F0+16+4*kk+3}], {c}")
e("s_lshl_b32 s10, s3, 11")
e("v_lshl_add_u32 v5, v1, 4, s10")
e(f"ds_write_b128 v5, v[8:11] offset:{L_DP}")
e(f"ds_write_b128 v5, v[12:15] offset:{L_DP+1024}")
e("s_waitcnt lgkmcnt(0)")
e("s_barrier")
lend = newlab("guend")
e("s_cmp_eq_u32 s3, 0")
e(f"s_cbranch_scc0 {lend}")
e("v_and_b32 v4, 7, v1")
e("v_bfe_u32 v5, v1, 3, 2")
e("v_lshlrev_b32 v6, 5, v4")
e("v_lshl_add_u32 v6, v5, 2, v6")
for w in range(4):
    e(f"v_add_u32 v7, {L_DP + w*2048}, v6")
    e(f"ds_read2_b32 v[{8+2*w}:{9+2*w}], v7 offset0:0 offset1:4")
    e(f"v_add_u32 v7, {L_DP + w*2048 + 1024}, v6")
    e(f"ds_read2_b32 v[{16+2*w}:{17+2*w}], v7 offset0:0 offset1:4")
e("v_mul_u32_u24 v5, 2752, v5")
e("v_lshl_add_u32 v5, v4, 2, v5")
e("s_lshl_b32 s10, s95, 5")
e(f"s_add_u32 s10, s10, {ACT_OFF}")
e("v_add_u32 v5, s10, v5")
e("s_waitcnt lgkmcnt(0)")
for base in (8, 16):
    for k in range(2):
        e(f"v_add_f32 v{base+k}, v{base+k}, v{base+2+k}")
        e(f"v_add_f32 v{base+4+k}, v{base+4+k}, v{base+6+k}")
    for k in range(2):
        e(f"v_add_f32 v{base+k}, v{base+k}, v{base+4+k}")
rnd2(8, 9, 24)
rnd2(16, 17, 24)
for k in range(2):
    e(f"v_mul_f32 v{10+k}, s96, v{8+k}")
    e(f"v_sub_f32 v{10+k}, 0, v{10+k}")
    e(f"v_exp_f32 v{10+k}, v{10+k}")
    e(f"v_add_f32 v{10+k}, 1.0, v{10+k}")
    e(f"v_rcp_f32 v{12+k}, v{10+k}")
    e(f"v_mul_f32 v{14+k}, v{8+k}, v{12+k}")
    e(f"v_fma_f32 v{18+k}, -v{14+k}, v{10+k}, v{8+k}")
    e(f"v_fma_f32 v{18+k}, v{18+k}, v{12+k}, v{14+k}")
    e(f"v_cmp_class_f32 vcc, v{18+k}, 3")
    e(f"v_cndmask_b32 v{8+k}, v{18+k}, v{14+k}, vcc")
rnd2(8, 9, 24)
e("v_mul_f32 v8, v8, v16")
e("v_mul_f32 v9, v9, v17")
e("v_cvt_pk_bf16_f32 v8, v8, v9")
canon(8, 29)
e("s_mov_b32 exec_hi, 0")
e("buffer_store_dword v8, v5, s[48:51], 0 offen sc1")
e("s_mov_b64 exec, -1")
stamp(10)
e.label(lend)
e("s_endpgm")

e.label(ldn2)
e("s_barrier")
AF = 32
e("s_mul_i32 s10, s3, 11264")
e("v_add_u32 v7, s10, v7")
for k in range(11):
    base = L_FW + k * 1024
    e(f"ds_read_b64_tr_b16 v[{F0+4*k}:{F0+4*k+1}], v7 offset:{base}")
    e(f"ds_read_b64_tr_b16 v[{F0+4*k+2}:{F0+4*k+3}], v7 offset:{base+128}")
e("v_and_b32 v4, 3, v1")
e("v_mul_u32_u24 v4, 2752, v4")
e("v_lshl_add_u32 v4, v2, 4, v4")
e("s_mul_i32 s10, s3, 704")
e(f"s_add_u32 s10, s10, {ACT_OFF}")
e("v_add_u32 v5, s10, v4")
e("v_and_b32 v4, 7, v1")
e("v_bfe_u32 v6, v1, 3, 2")
e("v_lshlrev_b32 v7, 10, v6")
e("v_lshl_add_u32 v7, v4, 2, v7")
e("s_lshl_b32 s10, s95, 5")
e("v_add_u32 v7, s10, v7")
e(f"v_add_u32 v16, {H_OFF}, v7")
e("s_waitcnt lgkmcnt(0)")
lw3 = newlab("w3")
lj = newlab("dj")
e("s_cmp_eq_u32 s3, 3")
e(f"s_cbranch_scc1 {lw3}")


def act_loads(n):
    def f():
        for k in range(n):
            e(f"buffer_load_dwordx4 v[{AF+4*k}:{AF+4*k+3}], v5, s[48:51], 0 offen offset:{64*k} sc1")
        e("buffer_load_dword v17, v16, s[48:51], 0 offen sc1")
    return f


poll(act_loads(11), list(range(AF, AF + 44)) + [17], 18)
stamp(11)
e(f"v_mfma_f32_16x16x32_bf16 v[8:11], v[{AF+40}:{AF+43}], v[{F0+40}:{F0+43}], 0")
e(f"s_branch {lj}")
e.label(lw3)
poll(act_loads(10), list(range(AF, AF + 40)) + [17], 18)
for k in range(4):
    e(f"v_mov_b32 v{8+k}, 0")
e.label(lj)
for kk in range(10):
    e(f"v_mfma_f32_16x16x32_bf16 v[8:11], v[{AF+4*kk}:{AF+4*kk+3}], v[{F0+4*kk}:{F0+4*kk+3}], v[8:11]")
e("s_lshl_b32 s10, s3, 10")
e("v_lshl_add_u32 v5, v1, 4, s10")
e(f"ds_write_b128 v5, v[8:11] offset:{L_DP}")
e("s_waitcnt lgkmcnt(0)")
e("s_barrier")
lend = newlab("dnend")
e("s_cmp_eq_u32 s3, 0")
e(f"s_cbranch_scc0 {lend}")
e("v_lshlrev_b32 v5, 5, v4")
e("v_lshl_add_u32 v5, v6, 2, v5")
for w in range(4):
    e(f"v_add_u32 v19, {L_DP + w*1024}, v5")
    e(f"ds_read2_b32 v[{8+2*w}:{9+2*w}], v19 offset0:0 offset1:4")
e("s_waitcnt lgkmcnt(0)")
for k in range(2):
    e(f"v_add_f32 v{8+k}, v{8+k}, v{10+k}")
    e(f"v_add_f32 v{12+k}, v{12+k}, v{14+k}")
for k in range(2):
    e(f"v_add_f32 v{8+k}, v{8+k}, v{12+k}")
rnd2(8, 9, 24)
e("v_lshlrev_b32 v10, 16, v17")
e("v_and_b32 v11, 0xffff0000, v17")
e("v_add_f32 v8, v8, v10")
e("v_add_f32 v9, v9, v11")
e("v_cvt_pk_bf16_f32 v8, v8, v9")
e("s_mov_b32 exec_hi, 0")
e("global_store_dword v7, v8, s[34:35]")
e("s_mov_b64 exec, -1")
stamp(12)
e.label(lend)
e.raw("L_END:")
e("s_endpgm")

e.raw('.section .rodata,"a"')
e.raw(".p2align 6")
e.raw(f".amdhsa_kernel {NAME}_kernel")
e.raw("  .amdhsa_next_free_vgpr 168")
e.raw("  .amdhsa_next_free_sgpr 102")
e.raw("  .amdhsa_accum_offset 168")
e.raw("  .amdhsa_group_segment_fixed_size 0")
e.raw("  .amdhsa_kernarg_size 96")
e.raw("  .amdhsa_user_sgpr_count 2")
e.raw("  .amdhsa_user_sgpr_kernarg_segment_ptr 1")
e.raw("  .amdhsa_system_sgpr_workgroup_id_x 1")
e.raw(".end_amdhsa_kernel")

open(OUT, "w").write(e.text())
print("wrote", OUT, "lines", len(e.lines), "nops", e.nops_inserted)
```

```python
import sys, struct
from emit import Emitter, VmQueue

NAME = "sequential_preLN__sliding_block_cached__swiglu_ffn__decode"
OUT = sys.argv[1] if len(sys.argv) > 1 else f"cdna_kernels/{NAME}.s"

OPT = dict(kv_nt=" nt", w_nt=" nt", f_nt="", sleep=0, stamp=0, vearly=1, nowo=0)
for a in sys.argv[2:]:
    k, v = a.split("=")
    OPT[k] = int(v) if v.lstrip("-").isdigit() else ((" " + v) if v else "")


def f32(x):
    return "0x%08x" % struct.unpack("<I", struct.pack("<f", x))[0]


LOG2E = f32(1.4426950408889634)
CSC = f32(128 ** -0.5)
EPS = f32(1e-5)
INV512 = f32(1.0 / 512)

ML_OFF = 2048
H_OFF = 0x100000
ACT_OFF = 0x101000
Q_OFF = 0x104000
WS_SZ = 0x10C000
OOB = 0x7FFF0000

L_Q = 0
L_ST = 256
L_CT = 320
L_HS = 336
L_OP = 512
L_YP = 4608
L_DP = 12800
L_H = 20992
L_FW = 25088
L_XN = L_DP
L_QP = L_DP + 2048
LDS_BYTES = L_FW + 45056

e = Emitter()
lab_id = [0]


def newlab(p):
    lab_id[0] += 1
    return f"L_{p}_{lab_id[0]}"


def xrow_reduce(v, op, t):
    e(f"v_mov_b32 v{t}, v{v}")
    e(f"v_permlane16_swap_b32 v{v}, v{t}")
    e(f"{op} v{v}, v{v}, v{t}")
    e(f"v_mov_b32 v{t}, v{v}")
    e(f"v_permlane32_swap_b32 v{v}, v{t}")
    e(f"{op} v{v}, v{v}, v{t}")


def rnd1(v, t):
    e(f"v_cvt_pk_bf16_f32 v{t}, v{v}, v{v}")
    e(f"v_lshlrev_b32 v{v}, 16, v{t}")


def rnd2(a, b, t):
    e(f"v_cvt_pk_bf16_f32 v{t}, v{a}, v{b}")
    e(f"v_lshlrev_b32 v{a}, 16, v{t}")
    e(f"v_and_b32 v{b}, 0xffff0000, v{t}")


def halving8(a):
    for i in range(4):
        e(f"v_permlane32_swap_b32 v{a+i}, v{a+4+i}")
    for i in range(4):
        e(f"v_add_f32 v{a+i}, v{a+i}, v{a+4+i}")
    e(f"v_permlane16_swap_b32 v{a}, v{a+2}")
    e(f"v_permlane16_swap_b32 v{a+1}, v{a+3}")
    e(f"v_add_f32 v{a}, v{a}, v{a+2}")
    e(f"v_add_f32 v{a+1}, v{a+1}, v{a+3}")


def canon(v, vnan):
    e(f"v_cmp_eq_u32 vcc, -1, v{v}")
    e(f"v_cndmask_b32 v{v}, v{v}, v{vnan}, vcc")


def maxu_tree(regs, t):
    regs = list(regs)
    if len(regs) == 1:
        e(f"v_mov_b32 v{t}, v{regs[0]}")
        return
    if len(regs) == 2:
        e(f"v_max_u32 v{t}, v{regs[0]}, v{regs[1]}")
        return
    e(f"v_max3_u32 v{t}, v{regs[0]}, v{regs[1]}, v{regs[2]}")
    k = 3
    while k < len(regs):
        if k + 1 < len(regs):
            e(f"v_max3_u32 v{t}, v{t}, v{regs[k]}, v{regs[k+1]}")
            k += 2
        else:
            e(f"v_max_u32 v{t}, v{t}, v{regs[k]}")
            k += 1


def poll(load_fn, regs, t, sleep=None):
    lp = newlab("poll")
    dn = newlab("polldone")
    e("s_mov_b32 s14, 0")
    e.label(lp)
    load_fn()
    e("s_waitcnt vmcnt(0)")
    maxu_tree(regs, t)
    e(f"v_cmp_eq_u32 vcc, -1, v{t}")
    e("s_nop 4")
    e(f"s_cbranch_vccz {dn}")
    e("s_add_u32 s14, s14, 1")
    e("s_cmp_gt_u32 s14, 400000")
    e(f"s_cbranch_scc1 {dn}")
    e(f"s_sleep {OPT['sleep'] if sleep is None else sleep}")
    e(f"s_branch {lp}")
    e.label(dn)


SR = [164]


def stamp(idx, cond_wave=0):
    if not OPT["stamp"]:
        return
    R = SR[0]
    l = newlab("st")
    e(f"s_cmp_eq_u32 s3, {cond_wave}")
    e(f"s_cbranch_scc0 {l}")
    e("s_memrealtime s[98:99]")
    e("s_lshl_b32 s100, s2, 8")
    e(f"s_add_u32 s100, s100, {0x200000 + idx*8}")
    e("s_waitcnt lgkmcnt(0)")
    e(f"v_mov_b32 v{R}, s98")
    e(f"v_mov_b32 v{R+1}, s99")
    e(f"v_mov_b32 v{R+2}, s100")
    e("s_mov_b64 exec, 1")
    e(f"global_store_dwordx2 v{R+2}, v[{R}:{R+1}], s[38:39]")
    e("s_mov_b64 exec, -1")
    e.label(l)


def clr_check():
    lp = newlab("cnt")
    dn = newlab("cntdone")
    e("s_mov_b32 s14, 0")
    e("s_waitcnt vmcnt(0)")
    e.label(lp)
    e("v_cmp_gt_u32 vcc, 0x100, v31")
    e("s_nop 4")
    e(f"s_cbranch_vccz {dn}")
    e("s_add_u32 s14, s14, 1")
    e("s_cmp_gt_u32 s14, 100000")
    e(f"s_cbranch_scc1 {dn}")
    e("s_sleep 32")
    e("v_mov_b32 v31, 0")
    e("global_load_dword v31, v31, s[36:37] sc1")
    e("s_waitcnt vmcnt(0)")
    e(f"s_branch {lp}")
    e.label(dn)


def srd(d, lo, size):
    e(f"s_mov_b32 s{d}, s{lo}")
    e(f"s_and_b32 s{d+1}, s{lo+1}, 0xffff")
    e(f"s_mov_b32 s{d+2}, {size}")
    e(f"s_mov_b32 s{d+3}, 0x20000")


def red_b4(v):
    e(f"v_add_f32 v{v}, v{v}, v{v} row_ror:8")
    e(f"v_add_f32 v{v}, v{v}, v{v} row_ror:4")
    xrow_reduce(v, "v_add_f32", 7)


def ln_stats(X, vs, vt, vmb, vden, vr):
    e(f"v_add_f32 v{vs}, v{X}, v{X+1}")
    e(f"v_add_f32 v{vt}, v{X+2}, v{X+3}")
    for k in range(4, 32, 2):
        e(f"v_add_f32 v{vs}, v{vs}, v{X+k}")
        e(f"v_add_f32 v{vt}, v{vt}, v{X+k+1}")
    e(f"v_add_f32 v{vs}, v{vs}, v{vt}")
    red_b4(vs)
    e(f"v_mul_f32 v{vs}, {INV512}, v{vs}")
    e(f"v_mov_b32 v{vmb}, v{vs}")
    rnd1(vmb, vt)
    for k in range(32):
        e(f"v_sub_f32 v{X+k}, v{X+k}, v{vs}")
    e(f"v_mul_f32 v{vden}, v{X}, v{X}")
    e(f"v_mul_f32 v{vr}, v{X+1}, v{X+1}")
    for k in range(2, 32, 2):
        e(f"v_fmac_f32 v{vden}, v{X+k}, v{X+k}")
        e(f"v_fmac_f32 v{vr}, v{X+k+1}, v{X+k+1}")
    e(f"v_add_f32 v{vden}, v{vden}, v{vr}")
    red_b4(vden)
    e(f"v_mul_f32 v{vden}, {INV512}, v{vden}")
    rnd1(vden, vt)
    e(f"v_add_f32 v{vden}, {EPS}, v{vden}")
    rnd1(vden, vt)
    e(f"v_sqrt_f32 v{vden}, v{vden}")
    rnd1(vden, vt)
    e(f"v_rcp_f32 v{vr}, v{vden}")


def ln_apply_frags(HF, HX, vmb, vden, vr, T):
    for k in range(16):
        e(f"v_lshlrev_b32 v{HX+2*k}, 16, v{HF+k}")
        e(f"v_and_b32 v{HX+2*k+1}, 0xffff0000, v{HF+k}")
    for k in range(32):
        e(f"v_sub_f32 v{HX+k}, v{HX+k}, v{vmb}")
    for k in range(16):
        rnd2(HX + 2 * k, HX + 2 * k + 1, HF + k)
    for k0 in range(0, 32, 4):
        for j in range(4):
            e(f"v_mul_f32 v{T+j}, v{HX+k0+j}, v{vr}")
        for j in range(4):
            e(f"v_fma_f32 v{T+4+j}, -v{T+j}, v{vden}, v{HX+k0+j}")
        for j in range(4):
            e(f"v_fma_f32 v{HX+k0+j}, v{T+4+j}, v{vr}, v{T+j}")
    for k in range(16):
        e(f"v_cvt_pk_bf16_f32 v{HF+k}, v{HX+2*k}, v{HX+2*k+1}")


def tr_addr(v, t):
    e(f"v_lshrrev_b32 v{v}, 2, v3")
    e(f"v_lshl_add_u32 v{v}, v2, 3, v{v}")
    e(f"v_lshlrev_b32 v{v}, 5, v{v}")
    e(f"v_and_b32 v{t}, 3, v3")
    e(f"v_lshl_add_u32 v{v}, v{t}, 3, v{v}")


hdr = open(f"cdna_kernels/{NAME}.s.ref").read().split("\n")
head_lines = []
for ln in hdr:
    if ln.startswith("; @launch"):
        head_lines.append(f"; @launch grid=(256,1,1) block=(768,1,1) lds={LDS_BYTES}")
    elif ln.startswith(";"):
        head_lines.append(ln)
    else:
        break
e.raw("\n".join(head_lines))
e.raw('.amdgcn_target "amdgcn-amd-amdhsa--gfx950"')
e.raw(".text")
e.raw(f".globl {NAME}_kernel")
e.raw(".p2align 8")
e.raw(f".type {NAME}_kernel,@function")
e.raw(f"{NAME}_kernel:")

e("s_cmp_ge_u32 s2, 256")
e("s_cbranch_scc1 L_END")
if OPT["stamp"]:
    e("s_memrealtime s[90:91]")
e("s_load_dwordx16 s[16:31], s[0:1], 0")
e("s_load_dwordx8 s[32:39], s[0:1], 64")
e("v_lshrrev_b32 v4, 6, v0")
e("v_and_b32 v1, 63, v0")
e("v_readfirstlane_b32 s3, v4")
e("v_lshrrev_b32 v2, 4, v1")
e("v_and_b32 v3, 15, v1")
e("s_and_b32 s4, s2, 7")
e("s_lshr_b32 s5, s2, 3")
e("s_and_b32 s6, s5, 3")
if OPT["hmap"] == 1:
    e("s_add_u32 s7, s4, 3")
    e("s_and_b32 s7, s7, 7")
    e("s_lshl_b32 s6, s6, 3")
    e("s_add_u32 s6, s6, s7")
elif OPT["hmap"] == 2:
    e("s_lshl_b32 s7, s6, 1")
    e("s_add_u32 s7, s7, s4")
    e("s_and_b32 s7, s7, 7")
    e("s_lshl_b32 s6, s6, 3")
    e("s_add_u32 s6, s6, s7")
else:
    e("s_lshl_b32 s6, s6, 3")
    e("s_add_u32 s6, s6, s4")
e("s_lshr_b32 s7, s2, 5")
e("s_lshr_b32 s8, s7, 1")
e("s_and_b32 s9, s7, 1")
e(f"s_mov_b32 s96, {LOG2E}")
e(f"s_mov_b32 s97, {CSC}")
e("s_cmp_lt_u32 s3, 4")
e("s_cbranch_scc1 L_SERVICE")

AL, Q0, S0, A0, T0, MR, LR = 9, 10, 14, 22, 30, 38, 39
KSS, VSS = [40, 104], [72, 136]
SR[0] = T0
XV = 1 if OPT["stamp"] else 0
e("s_sub_u32 s3, s3, 4")
e("s_lshl_b32 s10, s8, 5")
e("s_add_u32 s10, s10, s6")
e("s_lshl_b32 s10, s10, 21")
e("s_lshl_b32 s11, s9, 18")
e("s_add_u32 s10, s10, s11")
e("s_add_u32 s10, s10, 0x180000")
e("v_lshlrev_b32 v4, 4, v1")
if OPT["rot"] == 1:
    e("s_mul_i32 s92, s2, 5")
elif OPT["rot"] == 2:
    e("s_lshr_b32 s92, s2, 3")
elif OPT["rot"] == 3:
    e("s_lshl_b32 s92, s6, 3")
else:
    e("s_mov_b32 s92, 0")
e("s_add_u32 s12, s3, s92")
e("s_and_b32 s12, s12, 31")
e("s_lshl_b32 s12, s12, 13")
e("s_add_u32 s13, s12, 4096")
e("s_waitcnt lgkmcnt(0)")
e("s_add_u32 s40, s18, s10")
e("s_addc_u32 s41, s19, 0")
e("s_and_b32 s41, s41, 0xffff")
e("s_mov_b32 s42, 0x40000")
e("s_mov_b32 s43, 0x20000")
e("s_add_u32 s44, s20, s10")
e("s_addc_u32 s45, s21, 0")
e("s_and_b32 s45, s45, 0xffff")
e("s_mov_b32 s46, 0x40000")
e("s_mov_b32 s47, 0x20000")


def kv_load(st, isv, k):
    sr = "s[44:47]" if isv else "s[40:43]"
    r = (VSS[st] if isv else KSS[st]) + 4 * k
    so = "s13" if k >= 4 else "s12"
    e(f"buffer_load_dwordx4 v[{r}:{r+3}], v4, {sr}, {so} offen offset:{(k&3)*1024}{OPT['kv_nt']}")


if OPT["stamp"]:
    l = newlab("st")
    e("s_cmp_eq_u32 s3, 0")
    e(f"s_cbranch_scc0 {l}")
    e("s_lshl_b32 s100, s2, 8")
    e(f"s_add_u32 s100, s100, {0x200000 + 13*8}")
    e(f"v_mov_b32 v{T0}, s90")
    e(f"v_mov_b32 v{T0+1}, s91")
    e(f"v_mov_b32 v{T0+2}, s100")
    e("s_mov_b64 exec, 1")
    e(f"global_store_dwordx2 v{T0+2}, v[{T0}:{T0+1}], s[38:39]")
    e("s_mov_b64 exec, -1")
    e.label(l)
e("s_barrier")
for k in range(8):
    kv_load(0, 0, k)
e("v_lshlrev_b32 v5, 5, v3")
e(f"v_mov_b32 v{MR}, 0xff7fffff")
e(f"v_mov_b32 v{LR}, 0")
e("v_mov_b32 v6, 0")
e("v_mov_b32 v7, 1")
e("s_barrier")
for k in range(8):
    kv_load(0, 1, k)
e(f"ds_read_b128 v[{A0}:{A0+3}], v5 offset:{L_QP}")
e(f"ds_read_b128 v[{A0+4}:{A0+7}], v5 offset:{L_QP+16}")
e(f"ds_read_b128 v[{S0}:{S0+3}], v5 offset:{L_QP+512}")
e(f"ds_read_b128 v[{S0+4}:{S0+7}], v5 offset:{L_QP+512+16}")
e(f"ds_read_b128 v[{T0}:{T0+3}], v5 offset:{L_QP+1024}")
e(f"ds_read_b128 v[{T0+4}:{T0+7}], v5 offset:{L_QP+1024+16}")
e("s_waitcnt lgkmcnt(0)")
for k in range(8):
    e(f"v_add_f32 v{A0+k}, v{A0+k}, v{S0+k}")
e(f"ds_read_b128 v[{S0}:{S0+3}], v5 offset:{L_QP+1536}")
e(f"ds_read_b128 v[{S0+4}:{S0+7}], v5 offset:{L_QP+1536+16}")
for k in range(8):
    e(f"v_add_f32 v{A0+k}, v{A0+k}, v{T0+k}")
e("s_waitcnt lgkmcnt(0)")
for k in range(8):
    e(f"v_add_f32 v{A0+k}, v{A0+k}, v{S0+k}")
for t in range(4):
    e(f"v_cvt_pk_bf16_f32 v{Q0+t}, v{A0+2*t}, v{A0+2*t+1}")
for k in range(8):
    e(f"v_mov_b32 v{A0+k}, 0")


def phase(st, sid):
    KS, VS = KSS[st], VSS[st]
    e("s_mov_b64 exec, 1")
    e(f"ds_add_rtn_u32 v8, v6, v7 offset:{L_CT}")
    e("s_mov_b64 exec, -1")
    for g0 in (0, 4):
        e("s_waitcnt vmcnt(12)")
        for t in range(4):
            for k in range(4):
                r = KS + 4 * (g0 + k)
                d = S0 + g0 + k
                if t == 0:
                    e(f"v_dot2_f32_bf16 v{d}, v{r}, v{Q0}, 0")
                else:
                    e(f"v_dot2c_f32_bf16 v{d}, v{r+t}, v{Q0+t}")
        if g0 == 0:
            e("s_waitcnt lgkmcnt(0)")
            e(f"v_readfirstlane_b32 {sid}, v8")
            e("s_nop 3")
            e(f"s_add_u32 s12, {sid}, s92")
            e("s_and_b32 s12, s12, 31")
            e(f"s_cmp_lt_u32 {sid}, 32")
            e("s_cselect_b32 s12, s12, 64")
            e("s_lshl_b32 s12, s12, 13")
            e("s_add_u32 s13, s12, 4096")
        for k in range(4):
            kv_load(st, 0, g0 + k)
    for r in (8, 4, 2, 1):
        for k in range(8):
            e(f"v_add_f32 v{S0+k}, v{S0+k}, v{S0+k} row_ror:{r}")
    for k in range(0, 8, 2):
        rnd2(S0 + k, S0 + k + 1, T0 + k // 2)
    for k in range(8):
        e(f"v_mul_f32 v{S0+k}, s97, v{S0+k}")
    for k in range(0, 8, 2):
        rnd2(S0 + k, S0 + k + 1, T0 + k // 2)
    e(f"v_max3_f32 v{T0}, v{S0}, v{S0+1}, v{S0+2}")
    e(f"v_max3_f32 v{T0+1}, v{S0+3}, v{S0+4}, v{S0+5}")
    e(f"v_max3_f32 v{T0+2}, v{S0+6}, v{S0+7}, v{MR}")
    e(f"v_max3_f32 v{T0}, v{T0}, v{T0+1}, v{T0+2}")
    e(f"v_sub_f32 v{AL}, v{MR}, v{T0}")
    e(f"v_mov_b32 v{MR}, v{T0}")
    for k in range(8):
        e(f"v_sub_f32 v{S0+k}, v{S0+k}, v{MR}")
    e(f"v_mul_f32 v{AL}, s96, v{AL}")
    for k in range(8):
        e(f"v_mul_f32 v{S0+k}, s96, v{S0+k}")
    e(f"v_exp_f32 v{AL}, v{AL}")
    for k in range(8):
        e(f"v_exp_f32 v{S0+k}, v{S0+k}")
    e(f"v_mul_f32 v{LR}, v{LR}, v{AL}")
    for k in range(8):
        e(f"v_mul_f32 v{A0+k}, v{A0+k}, v{AL}")
    e(f"v_add_f32 v{T0}, v{S0}, v{S0+1}")
    e(f"v_add_f32 v{T0+1}, v{S0+2}, v{S0+3}")
    e(f"v_add_f32 v{T0+2}, v{S0+4}, v{S0+5}")
    e(f"v_add_f32 v{T0+3}, v{S0+6}, v{S0+7}")
    e(f"v_add_f32 v{T0}, v{T0}, v{T0+1}")
    e(f"v_add_f32 v{T0+2}, v{T0+2}, v{T0+3}")
    e(f"v_add_f32 v{LR}, v{LR}, v{T0}")
    e(f"v_add_f32 v{LR}, v{LR}, v{T0+2}")
    for k in range(8):
        e(f"v_cvt_pk_bf16_f32 v{S0+k}, v{S0+k}, 0")
    for k in range(8):
        e(f"v_lshlrev_b32 v{T0+k}, 16, v{S0+k}")
    for k0 in range(0, 8, 2):
        e("s_waitcnt vmcnt(14)")
        for k in (k0, k0 + 1):
            r = VS + 4 * k
            for t in range(4):
                e(f"v_dot2c_f32_bf16 v{A0+2*t}, v{r+t}, v{S0+k}")
                e(f"v_dot2c_f32_bf16 v{A0+2*t+1}, v{r+t}, v{T0+k}")
        for k in (k0, k0 + 1):
            kv_load(st, 1, k)


e.label("L_SLOOP")
phase(0, "s14")
e("s_cmp_lt_u32 s14, 32")
e.fence()
e("s_cbranch_scc1 L_SLOOP")
e.label("L_SDONE")
e(f"v_mov_b32 v{T0}, v{MR}")
xrow_reduce(T0, "v_max_f32", T0 + 2)
e(f"v_sub_f32 v{AL}, v{MR}, v{T0}")
e(f"v_mul_f32 v{AL}, s96, v{AL}")
e(f"v_exp_f32 v{AL}, v{AL}")
e(f"v_mul_f32 v{T0+1}, v{LR}, v{AL}")
for k in range(8):
    e(f"v_mul_f32 v{A0+k}, v{A0+k}, v{AL}")
xrow_reduce(T0 + 1, "v_add_f32", T0 + 2)
halving8(A0)
e("s_lshl_b32 s11, s3, 3")
e("v_mov_b32 v6, s11")
e(f"ds_write_b64 v6, v[{T0}:{T0+1}] offset:{L_ST}")
e("s_lshl_b32 s11, s3, 9")
e("v_lshlrev_b32 v5, 5, v3")
e("v_lshl_add_u32 v6, v2, 3, v5")
e("v_add_u32 v6, s11, v6")
e(f"ds_write_b64 v6, v[{A0}:{A0+1}] offset:{L_OP}")
e("s_waitcnt lgkmcnt(0)")
stamp(4)
e("s_barrier")
e("s_endpgm")
SR[0] = 164

e.fence()
e.raw("L_SERVICE:")
W0 = 32
F0 = 96
e("s_lshl_b32 s93, s8, 6")
e("s_lshl_b32 s10, s6, 1")
e("s_add_u32 s93, s93, s10")
e("s_add_u32 s93, s93, s9")
e("s_lshl_b32 s93, s93, 12")
e("s_mov_b32 s94, 0")
e("s_mul_i32 s95, s4, 11")
e("s_add_u32 s95, s95, s5")
e("s_cmp_lt_u32 s5, 11")
e("s_cselect_b32 s10, 1, 0")
e("s_cmp_lt_u32 s95, 86")
e("s_cselect_b32 s11, 1, 0")
e("s_and_b32 s94, s10, s11")
e("s_sub_u32 s10, s5, 11")
e("s_cmp_lt_u32 s10, 4")
lr = newlab("role")
e(f"s_cbranch_scc0 {lr}")
e("s_mov_b32 s94, 2")
e("s_lshl_b32 s95, s4, 2")
e("s_add_u32 s95, s95, s10")
e.label(lr)
lr2 = newlab("role")
e("s_sub_u32 s10, s5, 16")
e("s_cmp_lt_u32 s10, 8")
e(f"s_cbranch_scc0 {lr2}")
e("s_mov_b32 s94, 3")
e("s_lshl_b32 s95, s10, 3")
e("s_add_u32 s95, s95, s4")
e.label(lr2)
e("s_lshl_b32 s12, s95, 6")
e("s_and_b32 s12, s12, 0xfff")
e(f"s_add_u32 s13, s12, {H_OFF}")
HS, HF, HX = 32, 48, 64
e("s_lshl_b32 s10, s8, 10")
e("v_lshl_add_u32 v5, v1, 4, s10")
e("s_lshl_b32 s10, s3, 20")
e("s_lshl_b32 s11, s6, 8")
e("s_add_u32 s10, s10, s11")
e("v_lshlrev_b32 v4, 18, v2")
e("v_lshl_add_u32 v4, v3, 4, v4")
e("v_add_u32 v4, s10, v4")
e("s_waitcnt lgkmcnt(0)")
srd(48, 38, WS_SZ)
srd(40, 22, 0x400000)
srd(44, 24, 0x400000)
lc = newlab("noclr")
e("s_cmp_eq_u32 s3, %d" % (3 if not OPT["noclr"] else 77))
e(f"s_cbranch_scc0 {lc}")
for k in range(160, 164):
    e(f"v_mov_b32 v{k}, -1")
e("v_lshl_add_u32 v11, v1, 4, s93")
e("buffer_store_dwordx4 v[160:163], v11, s[48:51], 0 offen sc1")
e("buffer_store_dwordx4 v[160:163], v11, s[48:51], 0 offen offset:1024 sc1")
e(f"v_mov_b32 v16, {OOB}")
e(f"s_add_u32 s10, s93, {ML_OFF}")
e("v_mov_b32 v17, s10")
e("v_cmp_eq_u32 vcc, 0, v1")
e("v_cndmask_b32 v16, v16, v17, vcc")
e("v_and_b32 v18, 7, v1")
e("v_lshrrev_b32 v19, 1, v18")
e("v_and_b32 v18, 1, v18")
e("v_lshrrev_b32 v20, 3, v1")
e("s_lshl_b32 s10, s95, 5")
e(f"s_add_u32 s10, s10, {ACT_OFF}")
e("s_cmp_eq_u32 s94, 1")
e(f"s_cselect_b32 s10, s10, {OOB}")
e("v_mul_u32_u24 v17, 2752, v19")
e("v_lshl_add_u32 v17, v18, 4, v17")
e("v_add_u32 v17, s10, v17")
e("v_cmp_eq_u32 vcc, 2, v20")
e("v_cndmask_b32 v16, v16, v17, vcc")
e("s_cmp_eq_u32 s94, 3")
e(f"s_cselect_b32 s10, s13, {OOB}")
e("v_subrev_u32 v17, 24, v1")
e("v_cmp_gt_u32 vcc, 4, v17")
e("v_lshl_add_u32 v17, v17, 4, s10")
e("v_cndmask_b32 v16, v16, v17, vcc")
e("buffer_store_dwordx4 v[160:163], v16, s[48:51], 0 offen sc1")
e.label(lc)
e("global_load_dwordx4 v[12:15], v5, s[16:17]")
for i in range(32):
    e(f"s_mov_b32 s10, {i*8192}")
    e(f"buffer_load_dwordx4 v[{W0+4*i}:{W0+4*i+3}], v4, s[40:43], s10 offen{OPT['w_nt']}")
e("s_barrier")
e("s_waitcnt vmcnt(32)")
X = 16
for t in range(4):
    e(f"v_lshlrev_b32 v{X+2*t}, 16, v{12+t}")
    e(f"v_and_b32 v{X+2*t+1}, 0xffff0000, v{12+t}")


def allred(v):
    for r in (8, 4, 2, 1):
        e(f"v_add_f32 v{v}, v{v}, v{v} row_ror:{r}")
    xrow_reduce(v, "v_add_f32", 7)


e(f"v_add_f32 v24, v{X}, v{X+1}")
e(f"v_add_f32 v25, v{X+2}, v{X+3}")
e(f"v_add_f32 v26, v{X+4}, v{X+5}")
e(f"v_add_f32 v27, v{X+6}, v{X+7}")
e("v_add_f32 v24, v24, v25")
e("v_add_f32 v26, v26, v27")
e("v_add_f32 v24, v24, v26")
allred(24)
e(f"v_mul_f32 v24, {INV512}, v24")
e("v_mov_b32 v26, v24")
rnd1(26, 25)
for k in range(8):
    e(f"v_sub_f32 v{8+k}, v{X+k}, v24")
e("v_mul_f32 v27, v8, v8")
for k in range(1, 8):
    e(f"v_fmac_f32 v27, v{8+k}, v{8+k}")
allred(27)
e(f"v_mul_f32 v27, {INV512}, v27")
rnd1(27, 25)
e(f"v_add_f32 v27, {EPS}, v27")
rnd1(27, 25)
e("v_sqrt_f32 v27, v27")
rnd1(27, 25)
e("v_rcp_f32 v28, v27")
for k in range(8):
    e(f"v_sub_f32 v{X+k}, v{X+k}, v26")
for k in range(0, 8, 2):
    rnd2(X + k, X + k + 1, 24)
for k in range(8):
    e(f"v_mul_f32 v{8+k}, v{X+k}, v28")
for k in range(8):
    e(f"v_fma_f32 v{X+k}, -v{8+k}, v27, v{X+k}")
for k in range(8):
    e(f"v_fma_f32 v{X+k}, v{X+k}, v28, v{8+k}")
for k in range(0, 8, 2):
    rnd2(X + k, X + k + 1, 24)
e("v_lshlrev_b32 v5, 5, v1")
e(f"ds_write_b128 v5, v[{X}:{X+3}] offset:{L_XN}")
e(f"ds_write_b128 v5, v[{X+4}:{X+7}] offset:{L_XN+16}")
e("s_lshl_b32 s10, s3, 9")
e("v_lshl_add_u32 v5, v2, 7, s10")
e("s_waitcnt lgkmcnt(0)")
QA = 8
for k in range(8):
    e(f"v_mov_b32 v{QA+k}, 0")
for i in range(32):
    if i % 4 == 0:
        e(f"ds_read_b128 v[{X}:{X+3}], v5 offset:{L_XN + i*4}")
        e(f"s_waitcnt vmcnt({28 - i})")
        e("s_waitcnt lgkmcnt(0)")
        for k in range(4):
            e(f"v_lshrrev_b32 v{X+4+k}, 16, v{X+k}")
    sl = W0 + 4 * i
    for t in range(4):
        e(f"v_dot2c_f32_bf16 v{QA+2*t}, v{sl+t}, v{X+4+(i%4)}")
        e(f"v_dot2c_f32_bf16 v{QA+2*t+1}, v{sl+t}, v{X+(i%4)}")
lc2 = newlab("noadd")
e("s_cmp_eq_u32 s3, 3")
e(f"s_cbranch_scc0 {lc2}")
e("v_mov_b32 v16, 0")
e("v_mov_b32 v17, 1")
e("s_mov_b64 exec, 1")
e("global_atomic_add v16, v17, s[36:37]")
e("s_mov_b64 exec, -1")
e.label(lc2)
halving8(QA)
e("v_lshlrev_b32 v5, 5, v3")
e("v_lshl_add_u32 v5, v2, 3, v5")
e("s_lshl_b32 s10, s3, 9")
e("v_add_u32 v6, s10, v5")
e(f"ds_write_b64 v6, v[{QA}:{QA+1}] offset:{L_QP}")
e("v_mov_b32 v6, 0")
e("v_mov_b32 v7, 8")
e(f"ds_write_b32 v6, v7 offset:{L_CT}")
e("s_waitcnt lgkmcnt(0)")
stamp(1)
e("s_barrier")
e("v_mov_b32 v30, 0x7fc00000")
e("v_mov_b32 v29, 0x7fc07fc0")
e("v_lshl_add_u32 v5, v3, 2, s12")
e("global_load_dword v160, v5, s[16:17]")
e("v_lshrrev_b32 v5, 1, v1")
e("v_and_b32 v6, 1, v1")
lgu = newlab("ldgu")
lfe = newlab("ldend")
e("s_cmp_eq_u32 s94, 1")
e(f"s_cbranch_scc1 {lgu}")
srd(52, 32, 1376 * 1024)
srd(56, 32, 1376 * 1024)
e("s_mul_i32 s10, s3, 352")
e("v_add_u32 v4, s10, v5")
e("v_lshlrev_b32 v4, 10, v4")
e(f"s_branch {lfe}")
e.label(lgu)
srd(52, 28, 512 * 2752)
srd(56, 30, 512 * 2752)
e("s_lshl_b32 s10, s3, 7")
e("v_add_u32 v4, s10, v5")
e("v_mul_u32_u24 v4, 2752, v4")
e.label(lfe)
e("v_lshl_add_u32 v4, v6, 4, v4")
e("s_lshl_b32 s10, s95, 5")
e("v_add_u32 v167, s10, v4")
e("v_mov_b32 v6, 0")
lp = newlab("wow")
dn = newlab("wowdone")
e.label(lp)
e(f"ds_read_b32 v7, v6 offset:{L_CT}")
e("s_waitcnt lgkmcnt(0)")
e("v_readfirstlane_b32 s10, v7")
e("s_nop 3")
e(f"s_cmp_ge_u32 s10, {OPT['wotrig']}")
e(f"s_cbranch_scc1 {dn}")
e("s_sleep 8")
e(f"s_branch {lp}")
e.label(dn)
e("s_lshl_b32 s10, s6, 7")
e("s_lshl_b32 s11, s3, 5")
e("s_add_u32 s10, s10, s11")
e("s_lshl_b32 s10, s10, 10")
e("v_lshl_add_u32 v4, v1, 4, s10")
for r in range(32 if not OPT["nowo"] else 0):
    if r % 4 == 0:
        e(f"s_mov_b32 s10, {(r//4)*4096}")
    e(f"buffer_load_dwordx4 v[{W0+4*r}:{W0+4*r+3}], v4, s[44:47], s10 offen offset:{(r%4)*1024}{OPT['wo_nt']}")
e("s_mov_b32 s10, 0x05040100")
e("s_mov_b32 s11, 0x07060302")
for j in range(16):
    e(f"s_waitcnt vmcnt({30-2*j})")
    for t in range(4):
        A, B = W0 + 8 * j + t, W0 + 8 * j + 4 + t
        e(f"v_perm_b32 v{8+t}, v{B}, v{A}, s10")
        e(f"v_perm_b32 v{B}, v{B}, v{A}, s11")
    for t in range(4):
        e(f"v_mov_b32 v{W0+8*j+t}, v{8+t}")
stamp(6)
e("v_mov_b32 v6, 0")
e("v_and_b32 v4, 31, v1")
e("s_lshl_b32 s10, s3, 7")
e("v_lshl_add_u32 v5, v4, 2, s10")
e("s_barrier")
stamp(5)
e("v_mov_b32 v31, 0x100")
lk = newlab("nock")
e("s_cmp_eq_u32 s3, 0")
e(f"s_cbranch_scc0 {lk}")
e("s_cmp_eq_u32 s94, 0")
e(f"s_cbranch_scc1 {lk}")
e("global_load_dword v31, v6, s[36:37] sc1")
e.label(lk)
for k in range(4):
    e(f"ds_read_b128 v[{8+4*k}:{11+4*k}], v6 offset:{L_ST+16*k}")
OWL = [24, 25, 26, 27, 28, 166, 4, 7]
for w in range(8):
    e(f"ds_read_b32 v{OWL[w]}, v5 offset:{L_OP + w*512}")
e("s_waitcnt lgkmcnt(0)")
e("v_max3_f32 v164, v8, v10, v12")
e("v_max3_f32 v165, v14, v16, v18")
e("v_max3_f32 v164, v164, v20, v22")
e("v_max_f32 v164, v164, v165")
for k in range(8):
    e(f"v_sub_f32 v{8+2*k}, v{8+2*k}, v164")
for k in range(8):
    e(f"v_mul_f32 v{8+2*k}, s96, v{8+2*k}")
for k in range(8):
    e(f"v_exp_f32 v{8+2*k}, v{8+2*k}")
e("v_mul_f32 v165, v8, v9")
e(f"v_mul_f32 v9, v8, v{OWL[0]}")
for k in range(1, 8):
    e(f"v_fmac_f32 v165, v{8+2*k}, v{9+2*k}")
    e(f"v_fmac_f32 v9, v{8+2*k}, v{OWL[k]}")
e("v_rcp_f32 v27, v165")
e("v_mul_f32 v26, v9, v27")
e("v_mov_b32_dpp v27, v26 quad_perm:[1,0,3,2] row_mask:0xf bank_mask:0xf")
e("v_cvt_pk_bf16_f32 v26, v26, v27")
e("v_mov_b32 v24, v164")
e("v_mov_b32 v25, v165")
YA = 8
for k in range(8):
    e(f"v_mov_b32 v{YA+k}, 0")
for j in range(16):
    e(f"v_readlane_b32 s{60+j}, v26, {2*j}")
for j in range(16):
    for t in range(4):
        e(f"v_dot2c_f32_bf16 v{YA+2*t}, s{60+j}, v{W0+8*j+t}")
        e(f"v_dot2c_f32_bf16 v{YA+2*t+1}, s{60+j}, v{W0+8*j+4+t}")
e("s_lshl_b32 s10, s3, 11")
e("v_lshl_add_u32 v5, v1, 5, s10")
e(f"ds_write_b128 v5, v[{YA}:{YA+3}] offset:{L_YP}")
e(f"ds_write_b128 v5, v[{YA+4}:{YA+7}] offset:{L_YP+16}")
e("s_waitcnt lgkmcnt(0)")
e("s_barrier")
stamp(7)
lred = newlab("red")
lrole = newlab("role2")
lml = newlab("ml")
lpub = newlab("pubdone")
e("s_cmp_eq_u32 s3, 0")
e(f"s_cbranch_scc1 {lpub}")
e("s_cmp_lt_u32 s3, 2")
e(f"s_cbranch_scc1 {lml}")
e("s_sub_u32 s10, s3, 2")
e("s_lshl_b32 s10, s10, 10")
e("v_lshl_add_u32 v5, v1, 4, s10")
for w in range(4):
    e(f"ds_read_b128 v[{8+4*w}:{11+4*w}], v5 offset:{L_YP + w*2048}")
e("s_waitcnt lgkmcnt(0)")
for k in range(4):
    e(f"v_add_f32 v{8+k}, v{8+k}, v{12+k}")
    e(f"v_add_f32 v{16+k}, v{16+k}, v{20+k}")
for k in range(4):
    e(f"v_add_f32 v{8+k}, v{8+k}, v{16+k}")
for k in range(4):
    canon(8 + k, 30)
e("v_add_u32 v5, s93, v5")
e("buffer_store_dwordx4 v[8:11], v5, s[48:51], 0 offen sc1")
e(f"s_branch {lpub}")
e.label(lml)
canon(24, 30)
canon(25, 30)
e(f"s_add_u32 s10, s93, {ML_OFF}")
e("v_mov_b32 v6, s10")
e("s_mov_b64 exec, 1")
e("buffer_store_dwordx2 v[24:25], v6, s[48:51], 0 offen sc1")
e("s_mov_b64 exec, -1")
e.label(lpub)
e("s_cmp_eq_u32 s94, 3")
e(f"s_cbranch_scc0 {lrole}")
clr_check()
e("s_barrier")
e("s_lshr_b32 s10, s95, 4")
e("s_lshl_b32 s10, s10, 18")
e("s_lshl_b32 s11, s3, 16")
e("s_add_u32 s10, s10, s11")
e("v_lshrrev_b32 v6, 3, v1")
e("v_and_b32 v5, 1, v1")
e("v_lshl_add_u32 v6, v6, 1, v5")
e("v_lshl_add_u32 v6, v6, 12, s10")
e("s_and_b32 s11, s95, 15")
e("s_lshl_b32 s11, s11, 7")
e("v_bfe_u32 v23, v1, 1, 2")
e("v_lshl_add_u32 v5, v23, 5, v6")
e("v_add_u32 v5, s11, v5")
RY = 32


def red_loads():
    e(f"buffer_load_dwordx4 v[{RY}:{RY+3}], v5, s[48:51], 0 offen sc1")
    e(f"buffer_load_dwordx4 v[{RY+4}:{RY+7}], v5, s[48:51], 0 offen offset:16 sc1")
    e(f"buffer_load_dwordx2 v[16:17], v6, s[48:51], 0 offen offset:{ML_OFF} sc1")


poll(red_loads, list(range(RY, RY + 8)) + [16, 17], 18)
stamp(8)
e("v_mov_b32_dpp v18, v16 quad_perm:[1,0,3,2] row_mask:0xf bank_mask:0xf")
e("v_mov_b32_dpp v19, v17 quad_perm:[1,0,3,2] row_mask:0xf bank_mask:0xf")
e("v_max_f32 v20, v16, v18")
e("v_sub_f32 v16, v16, v20")
e("v_sub_f32 v18, v18, v20")
e("v_mul_f32 v16, s96, v16")
e("v_mul_f32 v18, s96, v18")
e("v_exp_f32 v16, v16")
e("v_exp_f32 v18, v18")
e("v_mul_f32 v16, v16, v17")
e("v_mul_f32 v18, v18, v19")
e("v_add_f32 v18, v16, v18")
e("v_rcp_f32 v18, v18")
e("v_mul_f32 v16, v16, v18")
for k in range(8):
    e(f"v_mul_f32 v{RY+k}, v{RY+k}, v16")
for k in range(8):
    e(f"v_add_f32 v{RY+k}, v{RY+k}, v{RY+k} quad_perm:[1,0,3,2] row_mask:0xf bank_mask:0xf")
for k in range(8):
    e(f"v_add_f32 v{RY+k}, v{RY+k}, v{RY+k} row_ror:8")
halving8(RY)
e("v_lshlrev_b32 v5, 5, v23")
e("v_lshl_add_u32 v5, v2, 3, v5")
e("s_lshl_b32 s10, s3, 7")
e("v_add_u32 v5, s10, v5")
e(f"ds_write_b64 v5, v[{RY}:{RY+1}] offset:{L_DP}")
e("s_waitcnt lgkmcnt(0)")
e("s_barrier")
e("s_cmp_eq_u32 s3, 0")
e(f"s_cbranch_scc0 {lrole}")
e("v_lshlrev_b32 v5, 3, v3")
for w in range(4):
    e(f"ds_read_b64 v[{8+2*w}:{9+2*w}], v5 offset:{L_DP + 128*w}")
e("v_lshl_add_u32 v5, v3, 2, s13")
e("s_waitcnt lgkmcnt(0)")
for k in range(2):
    e(f"v_add_f32 v{8+k}, v{8+k}, v{10+k}")
    e(f"v_add_f32 v{12+k}, v{12+k}, v{14+k}")
for k in range(2):
    e(f"v_add_f32 v{8+k}, v{8+k}, v{12+k}")
rnd2(8, 9, 17)
e("v_lshlrev_b32 v10, 16, v160")
e("v_and_b32 v11, 0xffff0000, v160")
e("v_add_f32 v8, v8, v10")
e("v_add_f32 v9, v9, v11")
e("v_cvt_pk_bf16_f32 v8, v8, v9")
canon(8, 29)
e("s_mov_b32 exec_lo, 0xffff")
e("s_mov_b32 exec_hi, 0")
e("buffer_store_dword v8, v5, s[48:51], 0 offen sc1")
e("s_mov_b64 exec, -1")
e.label(lrole)
lA = newlab("dgu")
lB = newlab("ddn")
lC = newlab("dend")
e("s_cmp_eq_u32 s94, 1")
e(f"s_cbranch_scc1 {lA}")
e("s_cmp_eq_u32 s94, 2")
e(f"s_cbranch_scc1 {lB}")
e(f"s_branch {lC}")
e.label(lA)
e("s_lshl_b32 s11, s3, 12")
for i in range(4):
    e(f"s_add_u32 m0, s11, {L_FW + 1024*i}")
    e(f"s_mov_b32 s10, {i*32*2752}")
    e(f"buffer_load_dwordx4 v167, s[52:55], s10 offen lds{OPT['f_nt']}")
    e(f"s_add_u32 m0, s11, {L_FW + 16384 + 1024*i}")
    e("s_nop 0")
    e(f"buffer_load_dwordx4 v167, s[56:59], s10 offen lds{OPT['f_nt']}")
e(f"s_branch {lC}")
e.label(lB)
e("s_mul_i32 s11, s3, 11264")
for i in range(11):
    e(f"s_add_u32 m0, s11, {L_FW + 1024*i}")
    e(f"s_mov_b32 s10, {i*32*1024}")
    e(f"buffer_load_dwordx4 v167, s[52:55], s10 offen lds{OPT['f_nt']}")
e.label(lC)
lgu2 = newlab("gu")
ldn2 = newlab("dn")
tr_addr(7, 6)
clr_check()
e("s_cmp_eq_u32 s94, 1")
e(f"s_cbranch_scc1 {lgu2}")
e("s_cmp_eq_u32 s94, 2")
e(f"s_cbranch_scc1 {ldn2}")
e("s_endpgm")

e.label(lgu2)
e("s_lshl_b32 s10, s3, 12")
e("v_add_u32 v7, s10, v7")
for k in range(8):
    base = L_FW + (k // 4) * 16384 + (k % 4) * 1024
    e(f"ds_read_b64_tr_b16 v[{F0+4*k}:{F0+4*k+1}], v7 offset:{base}")
    e(f"ds_read_b64_tr_b16 v[{F0+4*k+2}:{F0+4*k+3}], v7 offset:{base+128}")
e("v_and_b32 v4, 3, v1")
e("v_lshlrev_b32 v4, 10, v4")
e("v_mov_b32 v20, 0x3f803f80")
e("s_barrier")
e("s_lshl_b32 s10, s3, 8")
e("v_lshlrev_b32 v5, 10, v2")
e("v_lshl_add_u32 v5, v3, 4, v5")
e("v_add_u32 v5, s10, v5")
e(f"v_add_u32 v6, {H_OFF}, v5")
poll(lambda: e(f"buffer_load_dwordx4 v[{HS}:{HS+3}], v6, s[48:51], 0 offen sc1"), range(HS, HS + 4), 7)
stamp(9)
e(f"ds_write_b128 v5, v[{HS}:{HS+3}] offset:{L_H}")
e("s_waitcnt lgkmcnt(0)")
e("s_barrier")
e("v_lshrrev_b32 v5, 2, v1")
e("v_lshl_add_u32 v5, v5, 6, v4")
for k in range(4):
    e(f"ds_read_b128 v[{HS+4*k}:{HS+4*k+3}], v5 offset:{L_H + 16*k}")
e("s_lshl_b32 s10, s3, 8")
e("v_lshl_add_u32 v6, v2, 4, v4")
e("v_add_u32 v6, s10, v6")
for k in range(4):
    e(f"ds_read_b128 v[{HF+4*k}:{HF+4*k+3}], v6 offset:{L_H + 64*k}")
e("v_cmp_eq_u32 s[10:11], 4, v3")
e("s_waitcnt lgkmcnt(0)")
for k in range(16):
    e(f"v_cndmask_b32 v{HF+k}, v{HF+k}, v20, s[10:11]")
e("s_waitcnt lgkmcnt(0)")
for kk in range(4):
    c = "0" if kk == 0 else "v[8:11]"
    e(f"v_mfma_f32_16x16x32_bf16 v[8:11], v[{HF+4*kk}:{HF+4*kk+3}], v[{F0+4*kk}:{F0+4*kk+3}], {c}")
    c = "0" if kk == 0 else "v[12:15]"
    e(f"v_mfma_f32_16x16x32_bf16 v[12:15], v[{HF+4*kk}:{HF+4*kk+3}], v[{F0+16+4*kk}:{F0+16+4*kk+3}], {c}")
e("s_lshl_b32 s10, s3, 11")
e("v_lshl_add_u32 v5, v1, 4, s10")
e(f"ds_write_b128 v5, v[8:11] offset:{L_DP}")
e(f"ds_write_b128 v5, v[12:15] offset:{L_DP+1024}")
lend = newlab("guend")
lg3 = newlab("g3")
e("s_cmp_eq_u32 s3, 0")
e(f"s_cbranch_scc0 {lg3}")
for k in range(16):
    e(f"v_lshlrev_b32 v{HX+2*k}, 16, v{HS+k}")
    e(f"v_and_b32 v{HX+2*k+1}, 0xffff0000, v{HS+k}")
ln_stats(HX, 24, 25, 26, 27, 28)
e.label(lg3)
e("s_waitcnt lgkmcnt(0)")
e("s_barrier")
e("s_cmp_eq_u32 s3, 0")
e(f"s_cbranch_scc0 {lend}")
e("v_bfe_u32 v4, v1, 2, 3")
e("v_and_b32 v5, 3, v1")
e("v_lshlrev_b32 v6, 5, v4")
e("v_lshl_add_u32 v7, v5, 2, v6")
e("v_add_u32 v6, 256, v6")
for w in range(4):
    e(f"v_add_u32 v21, {L_DP + w*2048}, v7")
    e(f"ds_read2_b32 v[{32+2*w}:{33+2*w}], v21 offset0:0 offset1:4")
    e(f"v_add_u32 v21, {L_DP + w*2048 + 1024}, v7")
    e(f"ds_read2_b32 v[{40+2*w}:{41+2*w}], v21 offset0:0 offset1:4")
    e(f"v_add_u32 v21, {L_DP + w*2048}, v6")
    e(f"ds_read2_b32 v[{48+2*w}:{49+2*w}], v21 offset0:0 offset1:4")
    e(f"v_add_u32 v21, {L_DP + w*2048 + 1024}, v6")
    e(f"ds_read2_b32 v[{56+2*w}:{57+2*w}], v21 offset0:0 offset1:4")
e("v_mul_u32_u24 v5, 2752, v5")
e("v_lshl_add_u32 v5, v4, 2, v5")
e("s_lshl_b32 s10, s95, 5")
e(f"s_add_u32 s10, s10, {ACT_OFF}")
e("v_add_u32 v5, s10, v5")
e("s_waitcnt lgkmcnt(0)")
for base in (32, 40, 48, 56):
    for k in range(2):
        e(f"v_add_f32 v{base+k}, v{base+k}, v{base+2+k}")
        e(f"v_add_f32 v{base+4+k}, v{base+4+k}, v{base+6+k}")
    for k in range(2):
        e(f"v_add_f32 v{base+k}, v{base+k}, v{base+4+k}")
for k in range(2):
    e(f"v_fma_f32 v{8+k}, -v26, v{48+k}, v{32+k}")
    e(f"v_fma_f32 v{16+k}, -v26, v{56+k}, v{40+k}")
for k in range(2):
    e(f"v_mul_f32 v{8+k}, v{8+k}, v28")
    e(f"v_mul_f32 v{16+k}, v{16+k}, v28")
rnd2(8, 9, 24)
rnd2(16, 17, 24)
for k in range(2):
    e(f"v_mul_f32 v{10+k}, s96, v{8+k}")
    e(f"v_sub_f32 v{10+k}, 0, v{10+k}")
    e(f"v_exp_f32 v{10+k}, v{10+k}")
    e(f"v_add_f32 v{10+k}, 1.0, v{10+k}")
    e(f"v_rcp_f32 v{12+k}, v{10+k}")
    e(f"v_mul_f32 v{14+k}, v{8+k}, v{12+k}")
    e(f"v_fma_f32 v{18+k}, -v{14+k}, v{10+k}, v{8+k}")
    e(f"v_fma_f32 v{18+k}, v{18+k}, v{12+k}, v{14+k}")
    e(f"v_cmp_class_f32 vcc, v{18+k}, 3")
    e(f"v_cndmask_b32 v{8+k}, v{18+k}, v{14+k}, vcc")
rnd2(8, 9, 24)
e("v_mul_f32 v8, v8, v16")
e("v_mul_f32 v9, v9, v17")
e("v_cvt_pk_bf16_f32 v8, v8, v9")
canon(8, 29)
e("s_mov_b32 exec_hi, 0")
e("buffer_store_dword v8, v5, s[48:51], 0 offen sc1")
e("s_mov_b64 exec, -1")
stamp(10)
e.label(lend)
e("s_endpgm")

e.label(ldn2)
e("s_barrier")
AF = 32
e("s_mul_i32 s10, s3, 11264")
e("v_add_u32 v7, s10, v7")
for k in range(11):
    base = L_FW + k * 1024
    e(f"ds_read_b64_tr_b16 v[{F0+4*k}:{F0+4*k+1}], v7 offset:{base}")
    e(f"ds_read_b64_tr_b16 v[{F0+4*k+2}:{F0+4*k+3}], v7 offset:{base+128}")
L_A = L_H
L_A = L_YP
GA = 20
for i in range(3):
    e(f"v_add_u32 v4, {64*i}, v1")
    e("v_mul_u32_u24 v5, 1490, v4")
    e("v_lshrrev_b32 v5, 16, v5")
    e("v_mul_u32_u24 v6, 44, v5")
    e("v_sub_u32 v6, v4, v6")
    e("v_mul_u32_u24 v21, 2752, v5")
    e("v_lshl_add_u32 v21, v6, 4, v21")
    e("s_mul_i32 s10, s3, 704")
    e(f"s_add_u32 s10, s10, {ACT_OFF}")
    e(f"v_add_u32 v{GA+3+i}, s10, v21")
    e("v_mul_u32_u24 v21, 704, v5")
    e("v_lshl_add_u32 v21, v6, 4, v21")
    e("s_mul_i32 s10, s3, 2816")
    e(f"v_add_u32 v{GA+6+i}, s10, v21")
    e("s_cmp_eq_u32 s3, 3")
    e("s_cselect_b32 s11, 40, 44")
    e("v_cmp_gt_u32 vcc, s11, v6")
    e("v_cmp_gt_u32 s[10:11], 4, v5")
    e("s_and_b64 vcc, vcc, s[10:11]")
    e("s_mul_i32 s10, s3, 704")
    e(f"s_add_u32 s10, s10, {ACT_OFF}")
    e("v_mov_b32 v21, s10")
    e(f"v_cndmask_b32 v{GA+3+i}, v21, v{GA+3+i}, vcc")
    e(f"v_mov_b32 v21, {L_DP + 4096 - L_A}")
    e(f"v_cndmask_b32 v{GA+6+i}, v21, v{GA+6+i}, vcc")
e("v_and_b32 v4, 7, v1")
e("v_bfe_u32 v6, v1, 3, 2")
e("v_lshlrev_b32 v7, 10, v6")
e("v_lshl_add_u32 v7, v4, 2, v7")
e("s_lshl_b32 s10, s95, 5")
e("v_add_u32 v7, s10, v7")
e(f"v_add_u32 v16, {H_OFF}, v7")
e("s_waitcnt lgkmcnt(0)")
GR = 76


def act_loads():
    for i in range(3):
        e(f"buffer_load_dwordx4 v[{GR+4*i}:{GR+4*i+3}], v{GA+3+i}, s[48:51], 0 offen sc1")
    e("buffer_load_dword v17, v16, s[48:51], 0 offen sc1")


poll(act_loads, list(range(GR, GR + 12)) + [17], 18)
stamp(11)
for i in range(3):
    e(f"ds_write_b128 v{GA+6+i}, v[{GR+4*i}:{GR+4*i+3}] offset:{L_A}")
e("v_and_b32 v5, 3, v1")
e("v_mul_u32_u24 v5, 704, v5")
e("v_lshl_add_u32 v5, v2, 4, v5")
e("s_mul_i32 s10, s3, 2816")
e("v_add_u32 v5, s10, v5")
e("s_waitcnt lgkmcnt(0)")
for k in range(11):
    e(f"ds_read_b128 v[{AF+4*k}:{AF+4*k+3}], v5 offset:{L_A + 64*k}")
lw3 = newlab("w3")
lj = newlab("dj")
e("s_cmp_eq_u32 s3, 3")
e("s_waitcnt lgkmcnt(0)")
e(f"s_cbranch_scc1 {lw3}")
e(f"v_mfma_f32_16x16x32_bf16 v[8:11], v[{AF+40}:{AF+43}], v[{F0+40}:{F0+43}], 0")
e(f"s_branch {lj}")
e.label(lw3)
for k in range(4):
    e(f"v_mov_b32 v{8+k}, 0")
e.label(lj)
for kk in range(10):
    e(f"v_mfma_f32_16x16x32_bf16 v[8:11], v[{AF+4*kk}:{AF+4*kk+3}], v[{F0+4*kk}:{F0+4*kk+3}], v[8:11]")
e("s_lshl_b32 s10, s3, 10")
e("v_lshl_add_u32 v5, v1, 4, s10")
e(f"ds_write_b128 v5, v[8:11] offset:{L_H}")
e("s_waitcnt lgkmcnt(0)")
e("s_barrier")
lend = newlab("dnend")
e("s_cmp_eq_u32 s3, 0")
e(f"s_cbranch_scc0 {lend}")
e("v_lshlrev_b32 v5, 5, v4")
e("v_lshl_add_u32 v5, v6, 2, v5")
for w in range(4):
    e(f"v_add_u32 v19, {L_H + w*1024}, v5")
    e(f"ds_read2_b32 v[{8+2*w}:{9+2*w}], v19 offset0:0 offset1:4")
e("s_waitcnt lgkmcnt(0)")
for k in range(2):
    e(f"v_add_f32 v{8+k}, v{8+k}, v{10+k}")
    e(f"v_add_f32 v{12+k}, v{12+k}, v{14+k}")
for k in range(2):
    e(f"v_add_f32 v{8+k}, v{8+k}, v{12+k}")
rnd2(8, 9, 24)
e("v_lshlrev_b32 v10, 16, v17")
e("v_and_b32 v11, 0xffff0000, v17")
e("v_add_f32 v8, v8, v10")
e("v_add_f32 v9, v9, v11")
e("v_cvt_pk_bf16_f32 v8, v8, v9")
e("s_mov_b32 exec_hi, 0")
e("global_store_dword v7, v8, s[34:35]")
e("s_mov_b64 exec, -1")
stamp(12)
e.label(lend)
e.raw("L_END:")
e("s_endpgm")

e.raw('.section .rodata,"a"')
e.raw(".p2align 6")
e.raw(f".amdhsa_kernel {NAME}_kernel")
e.raw("  .amdhsa_next_free_vgpr 168")
e.raw("  .amdhsa_next_free_sgpr 102")
e.raw("  .amdhsa_accum_offset 168")
e.raw("  .amdhsa_group_segment_fixed_size 0")
e.raw("  .amdhsa_kernarg_size 96")
e.raw("  .amdhsa_user_sgpr_count 2")
e.raw("  .amdhsa_user_sgpr_kernarg_segment_ptr 1")
e.raw("  .amdhsa_system_sgpr_workgroup_id_x 1")
e.raw(".end_amdhsa_kernel")

open(OUT, "w").write(e.text())
print("wrote", OUT, "lines", len(e.lines), "nops", e.nops_inserted)
```

```python
import sys, struct
from emit import Emitter, VmQueue

NAME = "sequential_preLN__sliding_block_cached__swiglu_ffn__decode"
OUT = sys.argv[1] if len(sys.argv) > 1 else f"cdna_kernels/{NAME}.s"

OPT = dict(kv_nt=" nt", w_nt=" nt", f_nt="", sleep=0, stamp=0, vearly=1, nowo=0)
for a in sys.argv[2:]:
    k, v = a.split("=")
    OPT[k] = int(v) if v.lstrip("-").isdigit() else ((" " + v) if v else "")


def f32(x):
    return "0x%08x" % struct.unpack("<I", struct.pack("<f", x))[0]


LOG2E = f32(1.4426950408889634)
CSC = f32(128 ** -0.5)
EPS = f32(1e-5)
INV512 = f32(1.0 / 512)

ML_OFF = 2048
H_OFF = 0x100000
ACT_OFF = 0x101000
Q_OFF = 0x104000
WS_SZ = 0x10C000
OOB = 0x7FFF0000

L_Q = 0
L_ST = 256
L_CT = 320
L_HS = 384
L_OP = 512
L_YP = 4608
L_DP = 12800
L_H = 20992
L_FW = 25088
L_XN = L_DP
L_QP = L_DP + 2048
LDS_BYTES = L_FW + 45056

e = Emitter()
lab_id = [0]


def newlab(p):
    lab_id[0] += 1
    return f"L_{p}_{lab_id[0]}"


def xrow_reduce(v, op, t):
    e(f"v_mov_b32 v{t}, v{v}")
    e(f"v_permlane16_swap_b32 v{v}, v{t}")
    e(f"{op} v{v}, v{v}, v{t}")
    e(f"v_mov_b32 v{t}, v{v}")
    e(f"v_permlane32_swap_b32 v{v}, v{t}")
    e(f"{op} v{v}, v{v}, v{t}")


def rnd1(v, t):
    e(f"v_cvt_pk_bf16_f32 v{t}, v{v}, v{v}")
    e(f"v_lshlrev_b32 v{v}, 16, v{t}")


def rnd2(a, b, t):
    e(f"v_cvt_pk_bf16_f32 v{t}, v{a}, v{b}")
    e(f"v_lshlrev_b32 v{a}, 16, v{t}")
    e(f"v_and_b32 v{b}, 0xffff0000, v{t}")


def halving8(a):
    for i in range(4):
        e(f"v_permlane32_swap_b32 v{a+i}, v{a+4+i}")
    for i in range(4):
        e(f"v_add_f32 v{a+i}, v{a+i}, v{a+4+i}")
    e(f"v_permlane16_swap_b32 v{a}, v{a+2}")
    e(f"v_permlane16_swap_b32 v{a+1}, v{a+3}")
    e(f"v_add_f32 v{a}, v{a}, v{a+2}")
    e(f"v_add_f32 v{a+1}, v{a+1}, v{a+3}")


def canon(v, vnan):
    e(f"v_cmp_eq_u32 vcc, -1, v{v}")
    e(f"v_cndmask_b32 v{v}, v{v}, v{vnan}, vcc")


def maxu_tree(regs, t):
    regs = list(regs)
    if len(regs) == 1:
        e(f"v_mov_b32 v{t}, v{regs[0]}")
        return
    if len(regs) == 2:
        e(f"v_max_u32 v{t}, v{regs[0]}, v{regs[1]}")
        return
    e(f"v_max3_u32 v{t}, v{regs[0]}, v{regs[1]}, v{regs[2]}")
    k = 3
    while k < len(regs):
        if k + 1 < len(regs):
            e(f"v_max3_u32 v{t}, v{t}, v{regs[k]}, v{regs[k+1]}")
            k += 2
        else:
            e(f"v_max_u32 v{t}, v{t}, v{regs[k]}")
            k += 1


def poll(load_fn, regs, t, sleep=None):
    lp = newlab("poll")
    dn = newlab("polldone")
    e("s_mov_b32 s14, 0")
    e.label(lp)
    load_fn()
    e("s_waitcnt vmcnt(0)")
    maxu_tree(regs, t)
    e(f"v_cmp_eq_u32 vcc, -1, v{t}")
    e("s_nop 4")
    e(f"s_cbranch_vccz {dn}")
    e("s_add_u32 s14, s14, 1")
    e("s_cmp_gt_u32 s14, 400000")
    e(f"s_cbranch_scc1 {dn}")
    e(f"s_sleep {OPT['sleep'] if sleep is None else sleep}")
    e(f"s_branch {lp}")
    e.label(dn)


SR = [164]


def stamp(idx, cond_wave=0):
    if not OPT["stamp"]:
        return
    R = SR[0]
    l = newlab("st")
    e(f"s_cmp_eq_u32 s3, {cond_wave}")
    e(f"s_cbranch_scc0 {l}")
    e("s_memrealtime s[98:99]")
    e("s_lshl_b32 s100, s2, 8")
    e(f"s_add_u32 s100, s100, {0x200000 + idx*8}")
    e("s_waitcnt lgkmcnt(0)")
    e(f"v_mov_b32 v{R}, s98")
    e(f"v_mov_b32 v{R+1}, s99")
    e(f"v_mov_b32 v{R+2}, s100")
    e("s_mov_b64 exec, 1")
    e(f"global_store_dwordx2 v{R+2}, v[{R}:{R+1}], s[38:39]")
    e("s_mov_b64 exec, -1")
    e.label(l)


def clr_check():
    lp = newlab("cnt")
    dn = newlab("cntdone")
    e("s_mov_b32 s14, 0")
    e("s_waitcnt vmcnt(0)")
    e.label(lp)
    e("v_cmp_gt_u32 vcc, 0x100, v31")
    e("s_nop 4")
    e(f"s_cbranch_vccz {dn}")
    e("s_add_u32 s14, s14, 1")
    e("s_cmp_gt_u32 s14, 100000")
    e(f"s_cbranch_scc1 {dn}")
    e("s_sleep 32")
    e("v_mov_b32 v31, 0")
    e("global_load_dword v31, v31, s[36:37] sc1")
    e("s_waitcnt vmcnt(0)")
    e(f"s_branch {lp}")
    e.label(dn)


def srd(d, lo, size):
    e(f"s_mov_b32 s{d}, s{lo}")
    e(f"s_and_b32 s{d+1}, s{lo+1}, 0xffff")
    e(f"s_mov_b32 s{d+2}, {size}")
    e(f"s_mov_b32 s{d+3}, 0x20000")


def red_b4(v):
    e(f"v_add_f32 v{v}, v{v}, v{v} row_ror:8")
    e(f"v_add_f32 v{v}, v{v}, v{v} row_ror:4")
    xrow_reduce(v, "v_add_f32", 7)


def ln_stats(X, vs, vt, vmb, vden, vr):
    e(f"v_add_f32 v{vs}, v{X}, v{X+1}")
    e(f"v_add_f32 v{vt}, v{X+2}, v{X+3}")
    for k in range(4, 32, 2):
        e(f"v_add_f32 v{vs}, v{vs}, v{X+k}")
        e(f"v_add_f32 v{vt}, v{vt}, v{X+k+1}")
    e(f"v_add_f32 v{vs}, v{vs}, v{vt}")
    red_b4(vs)
    e(f"v_mul_f32 v{vs}, {INV512}, v{vs}")
    e(f"v_mov_b32 v{vmb}, v{vs}")
    rnd1(vmb, vt)
    for k in range(32):
        e(f"v_sub_f32 v{X+k}, v{X+k}, v{vs}")
    e(f"v_mul_f32 v{vden}, v{X}, v{X}")
    e(f"v_mul_f32 v{vr}, v{X+1}, v{X+1}")
    for k in range(2, 32, 2):
        e(f"v_fmac_f32 v{vden}, v{X+k}, v{X+k}")
        e(f"v_fmac_f32 v{vr}, v{X+k+1}, v{X+k+1}")
    e(f"v_add_f32 v{vden}, v{vden}, v{vr}")
    red_b4(vden)
    e(f"v_mul_f32 v{vden}, {INV512}, v{vden}")
    rnd1(vden, vt)
    e(f"v_add_f32 v{vden}, {EPS}, v{vden}")
    rnd1(vden, vt)
    e(f"v_sqrt_f32 v{vden}, v{vden}")
    rnd1(vden, vt)
    e(f"v_rcp_f32 v{vr}, v{vden}")


def ln_apply_frags(HF, HX, vmb, vden, vr, T):
    for k in range(16):
        e(f"v_lshlrev_b32 v{HX+2*k}, 16, v{HF+k}")
        e(f"v_and_b32 v{HX+2*k+1}, 0xffff0000, v{HF+k}")
    for k in range(32):
        e(f"v_sub_f32 v{HX+k}, v{HX+k}, v{vmb}")
    for k in range(16):
        rnd2(HX + 2 * k, HX + 2 * k + 1, HF + k)
    for k0 in range(0, 32, 4):
        for j in range(4):
            e(f"v_mul_f32 v{T+j}, v{HX+k0+j}, v{vr}")
        for j in range(4):
            e(f"v_fma_f32 v{T+4+j}, -v{T+j}, v{vden}, v{HX+k0+j}")
        for j in range(4):
            e(f"v_fma_f32 v{HX+k0+j}, v{T+4+j}, v{vr}, v{T+j}")
    for k in range(16):
        e(f"v_cvt_pk_bf16_f32 v{HF+k}, v{HX+2*k}, v{HX+2*k+1}")


def tr_addr(v, t):
    e(f"v_lshrrev_b32 v{v}, 2, v3")
    e(f"v_lshl_add_u32 v{v}, v2, 3, v{v}")
    e(f"v_lshlrev_b32 v{v}, 5, v{v}")
    e(f"v_and_b32 v{t}, 3, v3")
    e(f"v_lshl_add_u32 v{v}, v{t}, 3, v{v}")


hdr = open(f"cdna_kernels/{NAME}.s.ref").read().split("\n")
head_lines = []
for ln in hdr:
    if ln.startswith("; @launch"):
        head_lines.append(f"; @launch grid=(256,1,1) block=(768,1,1) lds={LDS_BYTES}")
    elif ln.startswith(";"):
        head_lines.append(ln)
    else:
        break
e.raw("\n".join(head_lines))
e.raw('.amdgcn_target "amdgcn-amd-amdhsa--gfx950"')
e.raw(".text")
e.raw(f".globl {NAME}_kernel")
e.raw(".p2align 8")
e.raw(f".type {NAME}_kernel,@function")
e.raw(f"{NAME}_kernel:")

e("s_cmp_ge_u32 s2, 256")
e("s_cbranch_scc1 L_END")
if OPT["stamp"]:
    e("s_memrealtime s[90:91]")
e("s_load_dwordx16 s[16:31], s[0:1], 0")
e("s_load_dwordx8 s[32:39], s[0:1], 64")
e("v_lshrrev_b32 v4, 6, v0")
e("v_and_b32 v1, 63, v0")
e("v_readfirstlane_b32 s3, v4")
e("v_lshrrev_b32 v2, 4, v1")
e("v_and_b32 v3, 15, v1")
e("s_and_b32 s4, s2, 7")
e("s_lshr_b32 s5, s2, 3")
e("s_and_b32 s6, s5, 3")
if OPT["hmap"] == 1:
    e("s_add_u32 s7, s4, 3")
    e("s_and_b32 s7, s7, 7")
    e("s_lshl_b32 s6, s6, 3")
    e("s_add_u32 s6, s6, s7")
elif OPT["hmap"] == 2:
    e("s_lshl_b32 s7, s6, 1")
    e("s_add_u32 s7, s7, s4")
    e("s_and_b32 s7, s7, 7")
    e("s_lshl_b32 s6, s6, 3")
    e("s_add_u32 s6, s6, s7")
else:
    e("s_lshl_b32 s6, s6, 3")
    e("s_add_u32 s6, s6, s4")
e("s_lshr_b32 s7, s2, 5")
e("s_lshr_b32 s8, s7, 1")
e("s_and_b32 s9, s7, 1")
e(f"s_mov_b32 s96, {LOG2E}")
e(f"s_mov_b32 s97, {CSC}")
e("s_cmp_lt_u32 s3, 4")
e("s_cbranch_scc1 L_SERVICE")

AL, Q0, S0, A0, T0, MR, LR = 9, 10, 14, 22, 30, 38, 39
KSS, VSS = [40, 104], [72, 136]
SR[0] = T0
XV = 1 if OPT["stamp"] else 0
e("s_sub_u32 s3, s3, 4")
e("s_lshl_b32 s10, s8, 5")
e("s_add_u32 s10, s10, s6")
e("s_lshl_b32 s10, s10, 21")
e("s_lshl_b32 s11, s9, 18")
e("s_add_u32 s10, s10, s11")
e("s_add_u32 s10, s10, 0x180000")
e("v_lshlrev_b32 v4, 4, v1")
if OPT["rot"] == 1:
    e("s_mul_i32 s92, s2, 5")
elif OPT["rot"] == 2:
    e("s_lshr_b32 s92, s2, 3")
elif OPT["rot"] == 3:
    e("s_lshl_b32 s92, s6, 3")
else:
    e("s_mov_b32 s92, 0")
e("s_add_u32 s12, s3, s92")
e("s_and_b32 s12, s12, 31")
e("s_lshl_b32 s12, s12, 13")
e("s_add_u32 s13, s12, 4096")
e("s_waitcnt lgkmcnt(0)")
e("s_add_u32 s40, s18, s10")
e("s_addc_u32 s41, s19, 0")
e("s_and_b32 s41, s41, 0xffff")
e("s_mov_b32 s42, 0x40000")
e("s_mov_b32 s43, 0x20000")
e("s_add_u32 s44, s20, s10")
e("s_addc_u32 s45, s21, 0")
e("s_and_b32 s45, s45, 0xffff")
e("s_mov_b32 s46, 0x40000")
e("s_mov_b32 s47, 0x20000")


def kv_load(st, isv, k):
    sr = "s[44:47]" if isv else "s[40:43]"
    r = (VSS[st] if isv else KSS[st]) + 4 * k
    so = "s13" if k >= 4 else "s12"
    e(f"buffer_load_dwordx4 v[{r}:{r+3}], v4, {sr}, {so} offen offset:{(k&3)*1024}{OPT['kv_nt']}")


if OPT["stamp"]:
    l = newlab("st")
    e("s_cmp_eq_u32 s3, 0")
    e(f"s_cbranch_scc0 {l}")
    e("s_lshl_b32 s100, s2, 8")
    e(f"s_add_u32 s100, s100, {0x200000 + 13*8}")
    e(f"v_mov_b32 v{T0}, s90")
    e(f"v_mov_b32 v{T0+1}, s91")
    e(f"v_mov_b32 v{T0+2}, s100")
    e("s_mov_b64 exec, 1")
    e(f"global_store_dwordx2 v{T0+2}, v[{T0}:{T0+1}], s[38:39]")
    e("s_mov_b64 exec, -1")
    e.label(l)
if OPT["nob0"] == 0:
    e("s_barrier")
for k in range(8 if OPT["nob0"] != 2 else 4):
    kv_load(0, 0, k)
if OPT["nob0"]:
    e("s_barrier")
if OPT["nob0"] == 2:
    for k in range(4, 8):
        kv_load(0, 0, k)
e("v_lshlrev_b32 v5, 5, v3")
e(f"v_mov_b32 v{MR}, 0xff7fffff")
e(f"v_mov_b32 v{LR}, 0")
e("v_mov_b32 v6, 0")
e("v_mov_b32 v7, 1")
e("s_barrier")
for k in range(8):
    kv_load(0, 1, k)
e(f"ds_read_b128 v[{A0}:{A0+3}], v5 offset:{L_QP}")
e(f"ds_read_b128 v[{A0+4}:{A0+7}], v5 offset:{L_QP+16}")
e(f"ds_read_b128 v[{S0}:{S0+3}], v5 offset:{L_QP+512}")
e(f"ds_read_b128 v[{S0+4}:{S0+7}], v5 offset:{L_QP+512+16}")
e(f"ds_read_b128 v[{T0}:{T0+3}], v5 offset:{L_QP+1024}")
e(f"ds_read_b128 v[{T0+4}:{T0+7}], v5 offset:{L_QP+1024+16}")
e("s_waitcnt lgkmcnt(0)")
for k in range(8):
    e(f"v_add_f32 v{A0+k}, v{A0+k}, v{S0+k}")
e(f"ds_read_b128 v[{S0}:{S0+3}], v5 offset:{L_QP+1536}")
e(f"ds_read_b128 v[{S0+4}:{S0+7}], v5 offset:{L_QP+1536+16}")
for k in range(8):
    e(f"v_add_f32 v{A0+k}, v{A0+k}, v{T0+k}")
e("s_waitcnt lgkmcnt(0)")
for k in range(8):
    e(f"v_add_f32 v{A0+k}, v{A0+k}, v{S0+k}")
for t in range(4):
    e(f"v_cvt_pk_bf16_f32 v{Q0+t}, v{A0+2*t}, v{A0+2*t+1}")
for k in range(8):
    e(f"v_mov_b32 v{A0+k}, 0")


def phase(st, sid):
    KS, VS = KSS[st], VSS[st]
    e("s_mov_b64 exec, 1")
    e(f"ds_add_rtn_u32 v8, v6, v7 offset:{L_CT}")
    e("s_mov_b64 exec, -1")
    for g0 in (0, 4):
        e("s_waitcnt vmcnt(12)")
        for t in range(4):
            for k in range(4):
                r = KS + 4 * (g0 + k)
                d = S0 + g0 + k
                if t == 0:
                    e(f"v_dot2_f32_bf16 v{d}, v{r}, v{Q0}, 0")
                else:
                    e(f"v_dot2c_f32_bf16 v{d}, v{r+t}, v{Q0+t}")
        if g0 == 0:
            e("s_waitcnt lgkmcnt(0)")
            e(f"v_readfirstlane_b32 {sid}, v8")
            e("s_nop 3")
            e(f"s_add_u32 s12, {sid}, s92")
            e("s_and_b32 s12, s12, 31")
            e(f"s_cmp_lt_u32 {sid}, 32")
            e("s_cselect_b32 s12, s12, 64")
            e("s_lshl_b32 s12, s12, 13")
            e("s_add_u32 s13, s12, 4096")
        for k in range(4):
            kv_load(st, 0, g0 + k)
    for r in (8, 4, 2, 1):
        for k in range(8):
            e(f"v_add_f32 v{S0+k}, v{S0+k}, v{S0+k} row_ror:{r}")
    for k in range(0, 8, 2):
        rnd2(S0 + k, S0 + k + 1, T0 + k // 2)
    for k in range(8):
        e(f"v_mul_f32 v{S0+k}, s97, v{S0+k}")
    for k in range(0, 8, 2):
        rnd2(S0 + k, S0 + k + 1, T0 + k // 2)
    e(f"v_max3_f32 v{T0}, v{S0}, v{S0+1}, v{S0+2}")
    e(f"v_max3_f32 v{T0+1}, v{S0+3}, v{S0+4}, v{S0+5}")
    e(f"v_max3_f32 v{T0+2}, v{S0+6}, v{S0+7}, v{MR}")
    e(f"v_max3_f32 v{T0}, v{T0}, v{T0+1}, v{T0+2}")
    e(f"v_sub_f32 v{AL}, v{MR}, v{T0}")
    e(f"v_mov_b32 v{MR}, v{T0}")
    for k in range(8):
        e(f"v_sub_f32 v{S0+k}, v{S0+k}, v{MR}")
    e(f"v_mul_f32 v{AL}, s96, v{AL}")
    for k in range(8):
        e(f"v_mul_f32 v{S0+k}, s96, v{S0+k}")
    e(f"v_exp_f32 v{AL}, v{AL}")
    for k in range(8):
        e(f"v_exp_f32 v{S0+k}, v{S0+k}")
    e(f"v_mul_f32 v{LR}, v{LR}, v{AL}")
    for k in range(8):
        e(f"v_mul_f32 v{A0+k}, v{A0+k}, v{AL}")
    e(f"v_add_f32 v{T0}, v{S0}, v{S0+1}")
    e(f"v_add_f32 v{T0+1}, v{S0+2}, v{S0+3}")
    e(f"v_add_f32 v{T0+2}, v{S0+4}, v{S0+5}")
    e(f"v_add_f32 v{T0+3}, v{S0+6}, v{S0+7}")
    e(f"v_add_f32 v{T0}, v{T0}, v{T0+1}")
    e(f"v_add_f32 v{T0+2}, v{T0+2}, v{T0+3}")
    e(f"v_add_f32 v{LR}, v{LR}, v{T0}")
    e(f"v_add_f32 v{LR}, v{LR}, v{T0+2}")
    for k in range(8):
        e(f"v_cvt_pk_bf16_f32 v{S0+k}, v{S0+k}, 0")
    for k in range(8):
        e(f"v_lshlrev_b32 v{T0+k}, 16, v{S0+k}")
    for k0 in range(0, 8, 2):
        e("s_waitcnt vmcnt(14)")
        for k in (k0, k0 + 1):
            r = VS + 4 * k
            for t in range(4):
                e(f"v_dot2c_f32_bf16 v{A0+2*t}, v{r+t}, v{S0+k}")
                e(f"v_dot2c_f32_bf16 v{A0+2*t+1}, v{r+t}, v{T0+k}")
        for k in (k0, k0 + 1):
            kv_load(st, 1, k)


e.label("L_SLOOP")
phase(0, "s14")
e("s_cmp_lt_u32 s14, 32")
e.fence()
e("s_cbranch_scc1 L_SLOOP")
e.label("L_SDONE")
e(f"v_mov_b32 v{T0}, v{MR}")
xrow_reduce(T0, "v_max_f32", T0 + 2)
e(f"v_sub_f32 v{AL}, v{MR}, v{T0}")
e(f"v_mul_f32 v{AL}, s96, v{AL}")
e(f"v_exp_f32 v{AL}, v{AL}")
e(f"v_mul_f32 v{T0+1}, v{LR}, v{AL}")
for k in range(8):
    e(f"v_mul_f32 v{A0+k}, v{A0+k}, v{AL}")
xrow_reduce(T0 + 1, "v_add_f32", T0 + 2)
halving8(A0)
e("s_lshl_b32 s11, s3, 3")
e("v_mov_b32 v6, s11")
e(f"ds_write_b64 v6, v[{T0}:{T0+1}] offset:{L_ST}")
e("s_lshl_b32 s11, s3, 9")
e("v_lshlrev_b32 v5, 5, v3")
e("v_lshl_add_u32 v6, v2, 3, v5")
e("v_add_u32 v6, s11, v6")
e(f"ds_write_b64 v6, v[{A0}:{A0+1}] offset:{L_OP}")
e("s_waitcnt lgkmcnt(0)")
stamp(4)
e("s_barrier")
e("s_endpgm")
SR[0] = 164

e.fence()
e.raw("L_SERVICE:")
W0 = 32
F0 = 96
e("s_lshl_b32 s93, s8, 6")
e("s_lshl_b32 s10, s6, 1")
e("s_add_u32 s93, s93, s10")
e("s_add_u32 s93, s93, s9")
e("s_lshl_b32 s93, s93, 12")
e("s_mov_b32 s94, 0")
e("s_mul_i32 s95, s4, 11")
e("s_add_u32 s95, s95, s5")
e("s_cmp_lt_u32 s5, 11")
e("s_cselect_b32 s10, 1, 0")
e("s_cmp_lt_u32 s95, 86")
e("s_cselect_b32 s11, 1, 0")
e("s_and_b32 s94, s10, s11")
e("s_sub_u32 s10, s5, 11")
e("s_cmp_lt_u32 s10, 4")
lr = newlab("role")
e(f"s_cbranch_scc0 {lr}")
e("s_mov_b32 s94, 2")
e("s_lshl_b32 s95, s4, 2")
e("s_add_u32 s95, s95, s10")
e.label(lr)
lr2 = newlab("role")
e("s_sub_u32 s10, s5, 16")
e("s_cmp_lt_u32 s10, 8")
e(f"s_cbranch_scc0 {lr2}")
e("s_mov_b32 s94, 3")
e("s_lshl_b32 s95, s10, 3")
e("s_add_u32 s95, s95, s4")
e.label(lr2)
e("s_lshl_b32 s12, s95, 6")
e("s_and_b32 s12, s12, 0xfff")
e(f"s_add_u32 s13, s12, {H_OFF}")
HS, HF, HX = 32, 48, 64
e("s_lshl_b32 s10, s8, 10")
e("v_lshl_add_u32 v5, v1, 4, s10")
e("s_lshl_b32 s10, s3, 20")
e("s_lshl_b32 s11, s6, 8")
e("s_add_u32 s10, s10, s11")
e("v_lshlrev_b32 v4, 18, v2")
e("v_lshl_add_u32 v4, v3, 4, v4")
e("v_add_u32 v4, s10, v4")
e("s_waitcnt lgkmcnt(0)")
srd(48, 38, WS_SZ)
srd(40, 22, 0x400000)
srd(44, 24, 0x400000)
lc = newlab("noclr")
e("s_cmp_eq_u32 s3, %d" % (3 if not OPT["noclr"] else 77))
e(f"s_cbranch_scc0 {lc}")
for k in range(160, 164):
    e(f"v_mov_b32 v{k}, -1")
e("v_lshl_add_u32 v11, v1, 4, s93")
e("buffer_store_dwordx4 v[160:163], v11, s[48:51], 0 offen sc1")
e("buffer_store_dwordx4 v[160:163], v11, s[48:51], 0 offen offset:1024 sc1")
e(f"v_mov_b32 v16, {OOB}")
e(f"s_add_u32 s10, s93, {ML_OFF}")
e("v_mov_b32 v17, s10")
e("v_cmp_eq_u32 vcc, 0, v1")
e("v_cndmask_b32 v16, v16, v17, vcc")
e("v_and_b32 v18, 7, v1")
e("v_lshrrev_b32 v19, 1, v18")
e("v_and_b32 v18, 1, v18")
e("v_lshrrev_b32 v20, 3, v1")
e("s_lshl_b32 s10, s95, 5")
e(f"s_add_u32 s10, s10, {ACT_OFF}")
e("s_cmp_eq_u32 s94, 1")
e(f"s_cselect_b32 s10, s10, {OOB}")
e("v_mul_u32_u24 v17, 2752, v19")
e("v_lshl_add_u32 v17, v18, 4, v17")
e("v_add_u32 v17, s10, v17")
e("v_cmp_eq_u32 vcc, 2, v20")
e("v_cndmask_b32 v16, v16, v17, vcc")
e("s_cmp_eq_u32 s94, 3")
e(f"s_cselect_b32 s10, s13, {OOB}")
e("v_subrev_u32 v17, 24, v1")
e("v_cmp_gt_u32 vcc, 4, v17")
e("v_lshl_add_u32 v17, v17, 4, s10")
e("v_cndmask_b32 v16, v16, v17, vcc")
e("buffer_store_dwordx4 v[160:163], v16, s[48:51], 0 offen sc1")
e.label(lc)
e("global_load_dwordx4 v[12:15], v5, s[16:17]")
for i in range(32):
    e(f"s_mov_b32 s10, {i*8192}")
    e(f"buffer_load_dwordx4 v[{W0+4*i}:{W0+4*i+3}], v4, s[40:43], s10 offen{OPT['w_nt']}")
e("s_barrier")
e("s_waitcnt vmcnt(32)")
X = 16
for t in range(4):
    e(f"v_lshlrev_b32 v{X+2*t}, 16, v{12+t}")
    e(f"v_and_b32 v{X+2*t+1}, 0xffff0000, v{12+t}")


def allred(v):
    for r in (8, 4, 2, 1):
        e(f"v_add_f32 v{v}, v{v}, v{v} row_ror:{r}")
    xrow_reduce(v, "v_add_f32", 7)


e(f"v_add_f32 v24, v{X}, v{X+1}")
e(f"v_add_f32 v25, v{X+2}, v{X+3}")
e(f"v_add_f32 v26, v{X+4}, v{X+5}")
e(f"v_add_f32 v27, v{X+6}, v{X+7}")
e("v_add_f32 v24, v24, v25")
e("v_add_f32 v26, v26, v27")
e("v_add_f32 v24, v24, v26")
allred(24)
e(f"v_mul_f32 v24, {INV512}, v24")
e("v_mov_b32 v26, v24")
rnd1(26, 25)
for k in range(8):
    e(f"v_sub_f32 v{8+k}, v{X+k}, v24")
e("v_mul_f32 v27, v8, v8")
for k in range(1, 8):
    e(f"v_fmac_f32 v27, v{8+k}, v{8+k}")
allred(27)
e(f"v_mul_f32 v27, {INV512}, v27")
rnd1(27, 25)
e(f"v_add_f32 v27, {EPS}, v27")
rnd1(27, 25)
e("v_sqrt_f32 v27, v27")
rnd1(27, 25)
e("v_rcp_f32 v28, v27")
for k in range(8):
    e(f"v_sub_f32 v{X+k}, v{X+k}, v26")
for k in range(0, 8, 2):
    rnd2(X + k, X + k + 1, 24)
for k in range(8):
    e(f"v_mul_f32 v{8+k}, v{X+k}, v28")
for k in range(8):
    e(f"v_fma_f32 v{X+k}, -v{8+k}, v27, v{X+k}")
for k in range(8):
    e(f"v_fma_f32 v{X+k}, v{X+k}, v28, v{8+k}")
for k in range(0, 8, 2):
    rnd2(X + k, X + k + 1, 24)
e("v_lshlrev_b32 v5, 5, v1")
e(f"ds_write_b128 v5, v[{X}:{X+3}] offset:{L_XN}")
e(f"ds_write_b128 v5, v[{X+4}:{X+7}] offset:{L_XN+16}")
e("s_lshl_b32 s10, s3, 9")
e("v_lshl_add_u32 v5, v2, 7, s10")
e("s_waitcnt lgkmcnt(0)")
QA = 8
for k in range(8):
    e(f"v_mov_b32 v{QA+k}, 0")
for i in range(32):
    if i % 4 == 0:
        e(f"ds_read_b128 v[{X}:{X+3}], v5 offset:{L_XN + i*4}")
        e(f"s_waitcnt vmcnt({28 - i})")
        e("s_waitcnt lgkmcnt(0)")
        for k in range(4):
            e(f"v_lshrrev_b32 v{X+4+k}, 16, v{X+k}")
    sl = W0 + 4 * i
    for t in range(4):
        e(f"v_dot2c_f32_bf16 v{QA+2*t}, v{sl+t}, v{X+4+(i%4)}")
        e(f"v_dot2c_f32_bf16 v{QA+2*t+1}, v{sl+t}, v{X+(i%4)}")
lc2 = newlab("noadd")
e("s_cmp_eq_u32 s3, 3")
e(f"s_cbranch_scc0 {lc2}")
e("v_mov_b32 v16, 0")
e("v_mov_b32 v17, 1")
e("s_mov_b64 exec, 1")
e("global_atomic_add v16, v17, s[36:37]")
e("s_mov_b64 exec, -1")
e.label(lc2)
halving8(QA)
e("v_lshlrev_b32 v5, 5, v3")
e("v_lshl_add_u32 v5, v2, 3, v5")
e("s_lshl_b32 s10, s3, 9")
e("v_add_u32 v6, s10, v5")
e(f"ds_write_b64 v6, v[{QA}:{QA+1}] offset:{L_QP}")
e("v_mov_b32 v6, 0")
e("v_mov_b32 v7, 8")
e(f"ds_write_b32 v6, v7 offset:{L_CT}")
e("s_waitcnt lgkmcnt(0)")
stamp(1)
e("s_barrier")
e("v_mov_b32 v30, 0x7fc00000")
e("v_mov_b32 v29, 0x7fc07fc0")
e("v_lshl_add_u32 v5, v3, 2, s12")
e("global_load_dword v160, v5, s[16:17]")
e("v_lshrrev_b32 v5, 1, v1")
e("v_and_b32 v6, 1, v1")
lgu = newlab("ldgu")
lfe = newlab("ldend")
e("s_cmp_eq_u32 s94, 1")
e(f"s_cbranch_scc1 {lgu}")
srd(52, 32, 1376 * 1024)
srd(56, 32, 1376 * 1024)
e("s_mul_i32 s10, s3, 352")
e("v_add_u32 v4, s10, v5")
e("v_lshlrev_b32 v4, 10, v4")
e(f"s_branch {lfe}")
e.label(lgu)
srd(52, 28, 512 * 2752)
srd(56, 30, 512 * 2752)
e("s_lshl_b32 s10, s3, 7")
e("v_add_u32 v4, s10, v5")
e("v_mul_u32_u24 v4, 2752, v4")
e.label(lfe)
e("v_lshl_add_u32 v4, v6, 4, v4")
e("s_lshl_b32 s10, s95, 5")
e("v_add_u32 v167, s10, v4")
e("v_mov_b32 v6, 0")
lp = newlab("wow")
dn = newlab("wowdone")
e.label(lp)
e(f"ds_read_b32 v7, v6 offset:{L_CT}")
e("s_waitcnt lgkmcnt(0)")
e("v_readfirstlane_b32 s10, v7")
e("s_nop 3")
e(f"s_cmp_ge_u32 s10, {OPT['wotrig']}")
e(f"s_cbranch_scc1 {dn}")
e("s_sleep 8")
e(f"s_branch {lp}")
e.label(dn)
e("s_lshl_b32 s10, s6, 7")
e("s_lshl_b32 s11, s3, 5")
e("s_add_u32 s10, s10, s11")
e("s_lshl_b32 s10, s10, 10")
e("v_lshl_add_u32 v4, v1, 4, s10")
for r in range(32 if not OPT["nowo"] else 0):
    if r % 4 == 0:
        e(f"s_mov_b32 s10, {(r//4)*4096}")
    e(f"buffer_load_dwordx4 v[{W0+4*r}:{W0+4*r+3}], v4, s[44:47], s10 offen offset:{(r%4)*1024}{OPT['wo_nt']}")
e("s_mov_b32 s10, 0x05040100")
e("s_mov_b32 s11, 0x07060302")
for j in range(16):
    e(f"s_waitcnt vmcnt({30-2*j})")
    for t in range(4):
        A, B = W0 + 8 * j + t, W0 + 8 * j + 4 + t
        e(f"v_perm_b32 v{8+t}, v{B}, v{A}, s10")
        e(f"v_perm_b32 v{B}, v{B}, v{A}, s11")
    for t in range(4):
        e(f"v_mov_b32 v{W0+8*j+t}, v{8+t}")
stamp(6)
e("v_mov_b32 v6, 0")
e("v_and_b32 v4, 31, v1")
e("s_lshl_b32 s10, s3, 7")
e("v_lshl_add_u32 v5, v4, 2, s10")
e("s_barrier")
stamp(5)
e("v_mov_b32 v31, 0x100")
lk = newlab("nock")
e("s_cmp_eq_u32 s3, 0")
e(f"s_cbranch_scc0 {lk}")
e("s_cmp_eq_u32 s94, 0")
e(f"s_cbranch_scc1 {lk}")
e("global_load_dword v31, v6, s[36:37] sc1")
e.label(lk)
for k in range(4):
    e(f"ds_read_b128 v[{8+4*k}:{11+4*k}], v6 offset:{L_ST+16*k}")
OWL = [24, 25, 26, 27, 28, 166, 4, 7]
for w in range(8):
    e(f"ds_read_b32 v{OWL[w]}, v5 offset:{L_OP + w*512}")
e("s_waitcnt lgkmcnt(0)")
e("v_max3_f32 v164, v8, v10, v12")
e("v_max3_f32 v165, v14, v16, v18")
e("v_max3_f32 v164, v164, v20, v22")
e("v_max_f32 v164, v164, v165")
for k in range(8):
    e(f"v_sub_f32 v{8+2*k}, v{8+2*k}, v164")
for k in range(8):
    e(f"v_mul_f32 v{8+2*k}, s96, v{8+2*k}")
for k in range(8):
    e(f"v_exp_f32 v{8+2*k}, v{8+2*k}")
e("v_mul_f32 v165, v8, v9")
e(f"v_mul_f32 v9, v8, v{OWL[0]}")
for k in range(1, 8):
    e(f"v_fmac_f32 v165, v{8+2*k}, v{9+2*k}")
    e(f"v_fmac_f32 v9, v{8+2*k}, v{OWL[k]}")
e("v_rcp_f32 v27, v165")
e("v_mul_f32 v26, v9, v27")
e("v_mov_b32_dpp v27, v26 quad_perm:[1,0,3,2] row_mask:0xf bank_mask:0xf")
e("v_cvt_pk_bf16_f32 v26, v26, v27")
e("v_mov_b32 v24, v164")
e("v_mov_b32 v25, v165")
YA = 8
for k in range(8):
    e(f"v_mov_b32 v{YA+k}, 0")
for j in range(16):
    e(f"v_readlane_b32 s{60+j}, v26, {2*j}")
for j in range(16):
    for t in range(4):
        e(f"v_dot2c_f32_bf16 v{YA+2*t}, s{60+j}, v{W0+8*j+t}")
        e(f"v_dot2c_f32_bf16 v{YA+2*t+1}, s{60+j}, v{W0+8*j+4+t}")
e("s_lshl_b32 s10, s3, 11")
e("v_lshl_add_u32 v5, v1, 5, s10")
e(f"ds_write_b128 v5, v[{YA}:{YA+3}] offset:{L_YP}")
e(f"ds_write_b128 v5, v[{YA+4}:{YA+7}] offset:{L_YP+16}")
e("s_waitcnt lgkmcnt(0)")
e("s_barrier")
stamp(7)
lred = newlab("red")
lrole = newlab("role2")
lml = newlab("ml")
lpub = newlab("pubdone")
e("s_cmp_eq_u32 s3, 0")
e(f"s_cbranch_scc1 {lpub}")
e("s_cmp_lt_u32 s3, 2")
e(f"s_cbranch_scc1 {lml}")
e("s_sub_u32 s10, s3, 2")
e("s_lshl_b32 s10, s10, 10")
e("v_lshl_add_u32 v5, v1, 4, s10")
for w in range(4):
    e(f"ds_read_b128 v[{8+4*w}:{11+4*w}], v5 offset:{L_YP + w*2048}")
e("s_waitcnt lgkmcnt(0)")
for k in range(4):
    e(f"v_add_f32 v{8+k}, v{8+k}, v{12+k}")
    e(f"v_add_f32 v{16+k}, v{16+k}, v{20+k}")
for k in range(4):
    e(f"v_add_f32 v{8+k}, v{8+k}, v{16+k}")
for k in range(4):
    canon(8 + k, 30)
e("v_add_u32 v5, s93, v5")
e("buffer_store_dwordx4 v[8:11], v5, s[48:51], 0 offen sc1")
e(f"s_branch {lpub}")
e.label(lml)
canon(24, 30)
canon(25, 30)
e(f"s_add_u32 s10, s93, {ML_OFF}")
e("v_mov_b32 v6, s10")
e("s_mov_b64 exec, 1")
e("buffer_store_dwordx2 v[24:25], v6, s[48:51], 0 offen sc1")
e("s_mov_b64 exec, -1")
e.label(lpub)
e("s_cmp_eq_u32 s94, 3")
e(f"s_cbranch_scc0 {lrole}")
clr_check()
e("s_barrier")
e("s_lshr_b32 s10, s95, 4")
e("s_lshl_b32 s10, s10, 18")
e("s_lshl_b32 s11, s3, 16")
e("s_add_u32 s10, s10, s11")
e("v_lshrrev_b32 v6, 3, v1")
e("v_and_b32 v5, 1, v1")
e("v_lshl_add_u32 v6, v6, 1, v5")
e("v_lshl_add_u32 v6, v6, 12, s10")
e("s_and_b32 s11, s95, 15")
e("s_lshl_b32 s11, s11, 7")
e("v_bfe_u32 v23, v1, 1, 2")
e("v_lshl_add_u32 v5, v23, 5, v6")
e("v_add_u32 v5, s11, v5")
RY = 32


def red_loads():
    e(f"buffer_load_dwordx4 v[{RY}:{RY+3}], v5, s[48:51], 0 offen sc1")
    e(f"buffer_load_dwordx4 v[{RY+4}:{RY+7}], v5, s[48:51], 0 offen offset:16 sc1")
    e(f"buffer_load_dwordx2 v[16:17], v6, s[48:51], 0 offen offset:{ML_OFF} sc1")


poll(red_loads, list(range(RY, RY + 8)) + [16, 17], 18)
stamp(8)
e("v_mov_b32_dpp v18, v16 quad_perm:[1,0,3,2] row_mask:0xf bank_mask:0xf")
e("v_mov_b32_dpp v19, v17 quad_perm:[1,0,3,2] row_mask:0xf bank_mask:0xf")
e("v_max_f32 v20, v16, v18")
e("v_sub_f32 v16, v16, v20")
e("v_sub_f32 v18, v18, v20")
e("v_mul_f32 v16, s96, v16")
e("v_mul_f32 v18, s96, v18")
e("v_exp_f32 v16, v16")
e("v_exp_f32 v18, v18")
e("v_mul_f32 v16, v16, v17")
e("v_mul_f32 v18, v18, v19")
e("v_add_f32 v18, v16, v18")
e("v_rcp_f32 v18, v18")
e("v_mul_f32 v16, v16, v18")
for k in range(8):
    e(f"v_mul_f32 v{RY+k}, v{RY+k}, v16")
for k in range(8):
    e(f"v_add_f32 v{RY+k}, v{RY+k}, v{RY+k} quad_perm:[1,0,3,2] row_mask:0xf bank_mask:0xf")
for k in range(8):
    e(f"v_add_f32 v{RY+k}, v{RY+k}, v{RY+k} row_ror:8")
halving8(RY)
e("v_lshlrev_b32 v5, 5, v23")
e("v_lshl_add_u32 v5, v2, 3, v5")
e("s_lshl_b32 s10, s3, 7")
e("v_add_u32 v5, s10, v5")
e(f"ds_write_b64 v5, v[{RY}:{RY+1}] offset:{L_DP}")
e("s_waitcnt lgkmcnt(0)")
e("s_barrier")
e("s_cmp_eq_u32 s3, 0")
e(f"s_cbranch_scc0 {lrole}")
e("v_lshlrev_b32 v5, 3, v3")
for w in range(4):
    e(f"ds_read_b64 v[{8+2*w}:{9+2*w}], v5 offset:{L_DP + 128*w}")
e("v_lshl_add_u32 v5, v3, 2, s13")
e("s_waitcnt lgkmcnt(0)")
for k in range(2):
    e(f"v_add_f32 v{8+k}, v{8+k}, v{10+k}")
    e(f"v_add_f32 v{12+k}, v{12+k}, v{14+k}")
for k in range(2):
    e(f"v_add_f32 v{8+k}, v{8+k}, v{12+k}")
rnd2(8, 9, 17)
e("v_lshlrev_b32 v10, 16, v160")
e("v_and_b32 v11, 0xffff0000, v160")
e("v_add_f32 v8, v8, v10")
e("v_add_f32 v9, v9, v11")
e("v_cvt_pk_bf16_f32 v8, v8, v9")
canon(8, 29)
e("s_mov_b32 exec_lo, 0xffff")
e("s_mov_b32 exec_hi, 0")
e("buffer_store_dword v8, v5, s[48:51], 0 offen sc1")
e("s_mov_b64 exec, -1")
e.label(lrole)
lA = newlab("dgu")
lB = newlab("ddn")
lC = newlab("dend")
e("s_cmp_eq_u32 s94, 1")
e(f"s_cbranch_scc1 {lA}")
e("s_cmp_eq_u32 s94, 2")
e(f"s_cbranch_scc1 {lB}")
e(f"s_branch {lC}")
e.label(lA)
e("s_lshl_b32 s11, s3, 12")
for i in range(4):
    e(f"s_add_u32 m0, s11, {L_FW + 1024*i}")
    e(f"s_mov_b32 s10, {i*32*2752}")
    e(f"buffer_load_dwordx4 v167, s[52:55], s10 offen lds{OPT['f_nt']}")
    e(f"s_add_u32 m0, s11, {L_FW + 16384 + 1024*i}")
    e("s_nop 0")
    e(f"buffer_load_dwordx4 v167, s[56:59], s10 offen lds{OPT['f_nt']}")
e(f"s_branch {lC}")
e.label(lB)
e("s_mul_i32 s11, s3, 11264")
for i in range(11):
    e(f"s_add_u32 m0, s11, {L_FW + 1024*i}")
    e(f"s_mov_b32 s10, {i*32*1024}")
    e(f"buffer_load_dwordx4 v167, s[52:55], s10 offen lds{OPT['f_nt']}")
e.label(lC)
lgu2 = newlab("gu")
ldn2 = newlab("dn")
tr_addr(7, 6)
clr_check()
e("s_cmp_eq_u32 s94, 1")
e(f"s_cbranch_scc1 {lgu2}")
e("s_cmp_eq_u32 s94, 2")
e(f"s_cbranch_scc1 {ldn2}")
e("s_endpgm")

e.label(lgu2)
e("s_lshl_b32 s10, s3, 12")
e("v_add_u32 v7, s10, v7")
for k in range(8):
    base = L_FW + (k // 4) * 16384 + (k % 4) * 1024
    e(f"ds_read_b64_tr_b16 v[{F0+4*k}:{F0+4*k+1}], v7 offset:{base}")
    e(f"ds_read_b64_tr_b16 v[{F0+4*k+2}:{F0+4*k+3}], v7 offset:{base+128}")
e("v_and_b32 v4, 3, v1")
e("v_lshlrev_b32 v4, 10, v4")
e("v_mov_b32 v20, 0x3f803f80")
e("s_barrier")
e("s_lshl_b32 s10, s3, 8")
e("v_lshlrev_b32 v5, 10, v2")
e("v_lshl_add_u32 v5, v3, 4, v5")
e("v_add_u32 v5, s10, v5")
e(f"v_add_u32 v6, {H_OFF}, v5")
poll(lambda: e(f"buffer_load_dwordx4 v[{HS}:{HS+3}], v6, s[48:51], 0 offen sc1"), range(HS, HS + 4), 7)
stamp(9)
e(f"ds_write_b128 v5, v[{HS}:{HS+3}] offset:{L_H}")
for t in range(4):
    e(f"v_lshlrev_b32 v{HX+2*t}, 16, v{HS+t}")
    e(f"v_and_b32 v{HX+2*t+1}, 0xffff0000, v{HS+t}")
e(f"v_add_f32 v24, v{HX}, v{HX+1}")
e(f"v_mul_f32 v25, v{HX}, v{HX}")
for k in range(2, 8):
    e(f"v_add_f32 v24, v24, v{HX+k}")
for k in range(1, 8):
    e(f"v_fmac_f32 v25, v{HX+k}, v{HX+k}")
for r in (8, 4, 2, 1):
    e(f"v_add_f32 v24, v24, v24 row_ror:{r}")
    e(f"v_add_f32 v25, v25, v25 row_ror:{r}")
e("s_lshl_b32 s10, s3, 5")
e("v_lshl_add_u32 v6, v2, 3, s10")
e(f"ds_write_b64 v6, v[24:25] offset:{L_HS}")
e("s_waitcnt lgkmcnt(0)")
e("s_barrier")
e("s_lshl_b32 s10, s3, 8")
e("v_lshl_add_u32 v6, v2, 4, v4")
e("v_add_u32 v6, s10, v6")
for k in range(4):
    e(f"ds_read_b128 v[{HF+4*k}:{HF+4*k+3}], v6 offset:{L_H + 64*k}")
e("v_cmp_eq_u32 s[10:11], 4, v3")
e("s_waitcnt lgkmcnt(0)")
for k in range(16):
    e(f"v_cndmask_b32 v{HF+k}, v{HF+k}, v20, s[10:11]")
e("s_waitcnt lgkmcnt(0)")
for kk in range(4):
    c = "0" if kk == 0 else "v[8:11]"
    e(f"v_mfma_f32_16x16x32_bf16 v[8:11], v[{HF+4*kk}:{HF+4*kk+3}], v[{F0+4*kk}:{F0+4*kk+3}], {c}")
    c = "0" if kk == 0 else "v[12:15]"
    e(f"v_mfma_f32_16x16x32_bf16 v[12:15], v[{HF+4*kk}:{HF+4*kk+3}], v[{F0+16+4*kk}:{F0+16+4*kk+3}], {c}")
e("s_lshl_b32 s10, s3, 11")
e("v_lshl_add_u32 v5, v1, 4, s10")
e(f"ds_write_b128 v5, v[8:11] offset:{L_DP}")
e(f"ds_write_b128 v5, v[12:15] offset:{L_DP+1024}")
lend = newlab("guend")
lg3 = newlab("g3")
e("s_cmp_eq_u32 s3, 0")
e(f"s_cbranch_scc0 {lg3}")
e("v_and_b32 v6, 3, v1")
e("v_lshlrev_b32 v6, 3, v6")
for w in range(4):
    e(f"ds_read_b64 v[{HX+2*w}:{HX+2*w+1}], v6 offset:{L_HS + 32*w}")
e("s_waitcnt lgkmcnt(0)")
e(f"v_add_f32 v24, v{HX}, v{HX+2}")
e(f"v_add_f32 v25, v{HX+4}, v{HX+6}")
e(f"v_add_f32 v27, v{HX+1}, v{HX+3}")
e(f"v_add_f32 v28, v{HX+5}, v{HX+7}")
e("v_add_f32 v24, v24, v25")
e("v_add_f32 v27, v27, v28")
e(f"v_mul_f32 v24, {INV512}, v24")
e(f"v_mul_f32 v27, {INV512}, v27")
e("v_fma_f32 v27, -v24, v24, v27")
e("v_max_f32 v27, 0, v27")
e("v_mov_b32 v26, v24")
rnd1(26, 25)
rnd1(27, 25)
e(f"v_add_f32 v27, {EPS}, v27")
rnd1(27, 25)
e("v_sqrt_f32 v27, v27")
rnd1(27, 25)
e("v_rcp_f32 v28, v27")
e.label(lg3)
e("s_waitcnt lgkmcnt(0)")
e("s_barrier")
e("s_cmp_eq_u32 s3, 0")
e(f"s_cbranch_scc0 {lend}")
e("v_bfe_u32 v4, v1, 2, 3")
e("v_and_b32 v5, 3, v1")
e("v_lshlrev_b32 v6, 5, v4")
e("v_lshl_add_u32 v7, v5, 2, v6")
e("v_add_u32 v6, 256, v6")
for w in range(4):
    e(f"v_add_u32 v21, {L_DP + w*2048}, v7")
    e(f"ds_read2_b32 v[{32+2*w}:{33+2*w}], v21 offset0:0 offset1:4")
    e(f"v_add_u32 v21, {L_DP + w*2048 + 1024}, v7")
    e(f"ds_read2_b32 v[{40+2*w}:{41+2*w}], v21 offset0:0 offset1:4")
    e(f"v_add_u32 v21, {L_DP + w*2048}, v6")
    e(f"ds_read2_b32 v[{48+2*w}:{49+2*w}], v21 offset0:0 offset1:4")
    e(f"v_add_u32 v21, {L_DP + w*2048 + 1024}, v6")
    e(f"ds_read2_b32 v[{56+2*w}:{57+2*w}], v21 offset0:0 offset1:4")
e("v_mul_u32_u24 v5, 2752, v5")
e("v_lshl_add_u32 v5, v4, 2, v5")
e("s_lshl_b32 s10, s95, 5")
e(f"s_add_u32 s10, s10, {ACT_OFF}")
e("v_add_u32 v5, s10, v5")
e("s_waitcnt lgkmcnt(0)")
for base in (32, 40, 48, 56):
    for k in range(2):
        e(f"v_add_f32 v{base+k}, v{base+k}, v{base+2+k}")
        e(f"v_add_f32 v{base+4+k}, v{base+4+k}, v{base+6+k}")
    for k in range(2):
        e(f"v_add_f32 v{base+k}, v{base+k}, v{base+4+k}")
for k in range(2):
    e(f"v_fma_f32 v{8+k}, -v26, v{48+k}, v{32+k}")
    e(f"v_fma_f32 v{16+k}, -v26, v{56+k}, v{40+k}")
for k in range(2):
    e(f"v_mul_f32 v{8+k}, v{8+k}, v28")
    e(f"v_mul_f32 v{16+k}, v{16+k}, v28")
rnd2(8, 9, 24)
rnd2(16, 17, 24)
for k in range(2):
    e(f"v_mul_f32 v{10+k}, s96, v{8+k}")
    e(f"v_sub_f32 v{10+k}, 0, v{10+k}")
    e(f"v_exp_f32 v{10+k}, v{10+k}")
    e(f"v_add_f32 v{10+k}, 1.0, v{10+k}")
    e(f"v_rcp_f32 v{12+k}, v{10+k}")
    e(f"v_mul_f32 v{14+k}, v{8+k}, v{12+k}")
    e(f"v_fma_f32 v{18+k}, -v{14+k}, v{10+k}, v{8+k}")
    e(f"v_fma_f32 v{18+k}, v{18+k}, v{12+k}, v{14+k}")
    e(f"v_cmp_class_f32 vcc, v{18+k}, 3")
    e(f"v_cndmask_b32 v{8+k}, v{18+k}, v{14+k}, vcc")
rnd2(8, 9, 24)
e("v_mul_f32 v8, v8, v16")
e("v_mul_f32 v9, v9, v17")
e("v_cvt_pk_bf16_f32 v8, v8, v9")
canon(8, 29)
e("s_mov_b32 exec_hi, 0")
e("buffer_store_dword v8, v5, s[48:51], 0 offen sc1")
e("s_mov_b64 exec, -1")
stamp(10)
e.label(lend)
e("s_endpgm")

e.label(ldn2)
e("s_barrier")
AF = 32
e("s_mul_i32 s10, s3, 11264")
e("v_add_u32 v7, s10, v7")
for k in range(11):
    base = L_FW + k * 1024
    e(f"ds_read_b64_tr_b16 v[{F0+4*k}:{F0+4*k+1}], v7 offset:{base}")
    e(f"ds_read_b64_tr_b16 v[{F0+4*k+2}:{F0+4*k+3}], v7 offset:{base+128}")
L_A = L_H
L_A = L_YP
GA = 20
for i in range(3):
    e(f"v_add_u32 v4, {64*i}, v1")
    e("v_mul_u32_u24 v5, 1490, v4")
    e("v_lshrrev_b32 v5, 16, v5")
    e("v_mul_u32_u24 v6, 44, v5")
    e("v_sub_u32 v6, v4, v6")
    e("v_mul_u32_u24 v21, 2752, v5")
    e("v_lshl_add_u32 v21, v6, 4, v21")
    e("s_mul_i32 s10, s3, 704")
    e(f"s_add_u32 s10, s10, {ACT_OFF}")
    e(f"v_add_u32 v{GA+3+i}, s10, v21")
    e("v_mul_u32_u24 v21, 704, v5")
    e("v_lshl_add_u32 v21, v6, 4, v21")
    e("s_mul_i32 s10, s3, 2816")
    e(f"v_add_u32 v{GA+6+i}, s10, v21")
    e("s_cmp_eq_u32 s3, 3")
    e("s_cselect_b32 s11, 40, 44")
    e("v_cmp_gt_u32 vcc, s11, v6")
    e("v_cmp_gt_u32 s[10:11], 4, v5")
    e("s_and_b64 vcc, vcc, s[10:11]")
    e("s_mul_i32 s10, s3, 704")
    e(f"s_add_u32 s10, s10, {ACT_OFF}")
    e("v_mov_b32 v21, s10")
    e(f"v_cndmask_b32 v{GA+3+i}, v21, v{GA+3+i}, vcc")
    e(f"v_mov_b32 v21, {L_DP + 4096 - L_A}")
    e(f"v_cndmask_b32 v{GA+6+i}, v21, v{GA+6+i}, vcc")
e("v_and_b32 v4, 7, v1")
e("v_bfe_u32 v6, v1, 3, 2")
e("v_lshlrev_b32 v7, 10, v6")
e("v_lshl_add_u32 v7, v4, 2, v7")
e("s_lshl_b32 s10, s95, 5")
e("v_add_u32 v7, s10, v7")
e(f"v_add_u32 v16, {H_OFF}, v7")
e("s_waitcnt lgkmcnt(0)")
GR = 76


def act_loads():
    for i in range(3):
        e(f"buffer_load_dwordx4 v[{GR+4*i}:{GR+4*i+3}], v{GA+3+i}, s[48:51], 0 offen sc1")
    e("buffer_load_dword v17, v16, s[48:51], 0 offen sc1")


poll(act_loads, list(range(GR, GR + 12)) + [17], 18)
stamp(11)
for i in range(3):
    e(f"ds_write_b128 v{GA+6+i}, v[{GR+4*i}:{GR+4*i+3}] offset:{L_A}")
e("v_and_b32 v5, 3, v1")
e("v_mul_u32_u24 v5, 704, v5")
e("v_lshl_add_u32 v5, v2, 4, v5")
e("s_mul_i32 s10, s3, 2816")
e("v_add_u32 v5, s10, v5")
e("s_waitcnt lgkmcnt(0)")
for k in range(11):
    e(f"ds_read_b128 v[{AF+4*k}:{AF+4*k+3}], v5 offset:{L_A + 64*k}")
lw3 = newlab("w3")
lj = newlab("dj")
e("s_cmp_eq_u32 s3, 3")
e("s_waitcnt lgkmcnt(0)")
e(f"s_cbranch_scc1 {lw3}")
e(f"v_mfma_f32_16x16x32_bf16 v[8:11], v[{AF+40}:{AF+43}], v[{F0+40}:{F0+43}], 0")
e(f"s_branch {lj}")
e.label(lw3)
for k in range(4):
    e(f"v_mov_b32 v{8+k}, 0")
e.label(lj)
for kk in range(10):
    e(f"v_mfma_f32_16x16x32_bf16 v[8:11], v[{AF+4*kk}:{AF+4*kk+3}], v[{F0+4*kk}:{F0+4*kk+3}], v[8:11]")
e("s_lshl_b32 s10, s3, 10")
e("v_lshl_add_u32 v5, v1, 4, s10")
e(f"ds_write_b128 v5, v[8:11] offset:{L_H}")
e("s_waitcnt lgkmcnt(0)")
e("s_barrier")
lend = newlab("dnend")
e("s_cmp_eq_u32 s3, 0")
e(f"s_cbranch_scc0 {lend}")
e("v_lshlrev_b32 v5, 5, v4")
e("v_lshl_add_u32 v5, v6, 2, v5")
for w in range(4):
    e(f"v_add_u32 v19, {L_H + w*1024}, v5")
    e(f"ds_read2_b32 v[{8+2*w}:{9+2*w}], v19 offset0:0 offset1:4")
e("s_waitcnt lgkmcnt(0)")
for k in range(2):
    e(f"v_add_f32 v{8+k}, v{8+k}, v{10+k}")
    e(f"v_add_f32 v{12+k}, v{12+k}, v{14+k}")
for k in range(2):
    e(f"v_add_f32 v{8+k}, v{8+k}, v{12+k}")
rnd2(8, 9, 24)
e("v_lshlrev_b32 v10, 16, v17")
e("v_and_b32 v11, 0xffff0000, v17")
e("v_add_f32 v8, v8, v10")
e("v_add_f32 v9, v9, v11")
e("v_cvt_pk_bf16_f32 v8, v8, v9")
e("s_mov_b32 exec_hi, 0")
e("global_store_dword v7, v8, s[34:35]")
e("s_mov_b64 exec, -1")
stamp(12)
e.label(lend)
e.raw("L_END:")
e("s_endpgm")

e.raw('.section .rodata,"a"')
e.raw(".p2align 6")
e.raw(f".amdhsa_kernel {NAME}_kernel")
e.raw("  .amdhsa_next_free_vgpr 168")
e.raw("  .amdhsa_next_free_sgpr 102")
e.raw("  .amdhsa_accum_offset 168")
e.raw("  .amdhsa_group_segment_fixed_size 0")
e.raw("  .amdhsa_kernarg_size 96")
e.raw("  .amdhsa_user_sgpr_count 2")
e.raw("  .amdhsa_user_sgpr_kernarg_segment_ptr 1")
e.raw("  .amdhsa_system_sgpr_workgroup_id_x 1")
e.raw(".end_amdhsa_kernel")

open(OUT, "w").write(e.text())
print("wrote", OUT, "lines", len(e.lines), "nops", e.nops_inserted)
```
